```python
import torch

def _softmax(x, axis=-1):
    return torch.softmax(x, dim=axis)

def _gelu(x):
    return torch.nn.functional.gelu(x, approximate='tanh')

def _silu(x):
    return torch.nn.functional.silu(x)

def _sigmoid(x):
    return torch.sigmoid(x)

def _layernorm(x, axis=-1, eps=1e-05):
    m = x.mean(dim=axis, keepdim=True)
    v = x.var(dim=axis, keepdim=True, unbiased=False)
    return (x - m) / torch.sqrt(v + eps)

def _scatter_add(tgt, idx, src, axis=0):
    return tgt.clone().index_add_(axis, idx, src)

def _segment_sum(src, seg, n):
    out = torch.zeros((n,) + src.shape[1:], dtype=src.dtype)
    return out.index_add_(0, seg, src)

def _pad(x, pw):
    flat = tuple((v for pair in reversed(pw) for v in pair))
    return torch.nn.functional.pad(x, flat)
kernel_name = 'adaLN_cond__compressed_kv_cla__dense_activation_mish__prompt'

def setup_inputs():

    _w = lambda a: (lambda t: t.to(torch.bfloat16) if t.is_floating_point() else t)(torch.as_tensor(a))

    def _A_setup():
        B, H, Sq, Sk, D, M = (1, 32, 2048, 2048, 128, 512)
        Dc = 4 * D
        return {'x': _w((lambda *s: torch.randn(*s, dtype=torch.bfloat16) * 0.05)(B, Sq, M)), 'c_kv': _w((lambda *s: torch.randn(*s, dtype=torch.bfloat16) * 0.4)(B, Sk, Dc)), 'w_q': _w((lambda *s: torch.randn(*s, dtype=torch.bfloat16) * 3.2)(M, H, D) * M ** (-0.5)), 'w_uk': _w((lambda *s: torch.randn(*s, dtype=torch.bfloat16) * 3.2)(Dc, H, D) * Dc ** (-0.5)), 'w_uv': _w((lambda *s: torch.randn(*s, dtype=torch.bfloat16) * 0.4)(Dc, H, D) * Dc ** (-0.5)), 'w_o': _w((lambda *s: torch.randn(*s, dtype=torch.bfloat16) * 0.4)(H, D, M) * (H * D) ** (-0.5))}
    _A_in = _A_setup()

    def _B_setup():
        B, S, D, F = (1, 2048, 512, 1792)
        return {'x': _w((lambda *s: torch.randn(*s, dtype=torch.bfloat16) * 0.05)(B, S, D)), 'w1': _w((lambda *s: torch.randn(*s, dtype=torch.bfloat16) * 0.8)(D, F) * D ** (-0.5)), 'b1': _w((lambda *s: torch.randn(*s, dtype=torch.bfloat16) * 0.2)(F)), 'w2': _w((lambda *s: torch.randn(*s, dtype=torch.bfloat16) * 0.1)(F, D) * F ** (-0.5))}
    _B_in = _B_setup()
    return {'A_x': _A_in['x'], 'A_c_kv': _A_in['c_kv'], 'A_w_q': _A_in['w_q'], 'A_w_uk': _A_in['w_uk'], 'A_w_uv': _A_in['w_uv'], 'A_w_o': _A_in['w_o'], 'B_x': _B_in['x'], 'B_w1': _B_in['w1'], 'B_b1': _B_in['b1'], 'B_w2': _B_in['w2'], 'c': _w((lambda *s: torch.randn(*s, dtype=torch.bfloat16) * 0.1)(1, 512) * 8.0), 'w_mod': _w((lambda *s: torch.randn(*s, dtype=torch.bfloat16) * 0.1)(512, 6 * 512) * 512 ** (-0.5) * 8.0)}

def reference(A_x, A_c_kv, A_w_q, A_w_uk, A_w_uv, A_w_o, B_x, B_w1, B_b1, B_w2, c, w_mod):

    def _A_ref(x, c_kv, w_q, w_uk, w_uv, w_o):
        B, Sq, M = (x.shape[0], x.shape[1], x.shape[2])
        Sk = c_kv.shape[1]
        H, D = (w_q.shape[1], w_q.shape[2])
        q = torch.einsum('bqm,mhd->bhqd', x, w_q)
        k = torch.einsum('bkc,chd->bhkd', c_kv, w_uk)
        v = torch.einsum('bkc,chd->bhkd', c_kv, w_uv)
        scores = torch.einsum('bhqd,bhkd->bhqk', q, k) * D ** (-0.5)
        off = Sk - Sq
        qi = torch.arange(Sq)[:, None]
        kj = torch.arange(Sk)[None, :]
        cmask = kj <= qi + off
        scores = torch.where(cmask[None, None], scores, -1000000000.0)
        p = _softmax(scores, axis=-1)
        ctx = torch.einsum('bhqk,bhkd->bhqd', p, v)
        return torch.einsum('bhqd,hdm->bqm', ctx, w_o)

    def _B_ref(x, w1, b1, w2):
        h = torch.einsum('bsd,df->bsf', x, w1) + b1
        sp = torch.log1p(torch.exp(-torch.abs(h))) + torch.where(h > 0, h, torch.zeros_like(h))
        act = h * torch.tanh(sp)
        return torch.einsum('bsf,fd->bsd', act, w2)
    x = A_x
    mod = (_silu(c) @ w_mod).reshape(c.shape[0], 6, 1, -1)
    sa, ca, ga, sb, cb, gb = (mod[:, 0].clone(), mod[:, 1].clone(), mod[:, 2].clone(), mod[:, 3].clone(), mod[:, 4].clone(), mod[:, 5].clone())
    h = _layernorm(x, axis=-1) * (1 + ca) + sa
    x = x + ga * _A_ref(h, A_c_kv, A_w_q, A_w_uk, A_w_uv, A_w_o)
    h = _layernorm(x, axis=-1) * (1 + cb) + sb
    x = x + gb * _B_ref(h, B_w1, B_b1, B_w2)
    return x
```

```python
import re

_REG = re.compile(r'^(-?\|?)(?:abs\()?([vas])(?:(\d+)|\[(\d+):(\d+)\])\)?\|?$')
TRANS = ("v_exp_f32","v_log_f32","v_rcp_f32","v_rsq_f32","v_sqrt_f32","v_sin_f32","v_cos_f32","v_rcp_iflag_f32",
         "v_exp_f16","v_log_f16","v_rcp_f16","v_rsq_f16","v_sqrt_f16")

def regs_of(tok):
    tok = tok.strip()
    if tok in ("vcc",): return {("s", 106), ("s", 107)}
    if tok == "vcc_lo": return {("s", 106)}
    if tok == "vcc_hi": return {("s", 107)}
    if tok == "exec": return {("s", 126), ("s", 127)}
    if tok == "m0": return {("s", 124)}
    m = _REG.match(tok)
    if not m: return set()
    f = m.group(2)
    if m.group(3) is not None: return {(f, int(m.group(3)))}
    return {(f, i) for i in range(int(m.group(4)), int(m.group(5)) + 1)}

def split_ops(s):
    ops, depth, cur = [], 0, ""
    for ch in s + ",":
        if ch in "[(": depth += 1
        elif ch in "])": depth -= 1
        if ch == "," and depth == 0:
            if cur.strip(): ops.append(cur.strip())
            cur = ""
        else: cur += ch
    out, mods = [], []
    for o in ops:
        parts = o.split()
        out.append(parts[0]); mods += parts[1:]
    return out, mods

class Ins:
    def __init__(self, text):
        self.text = text
        t = text.split(";")[0].strip()
        self.label = t[:-1] if t.endswith(":") else None
        self.directive = t.startswith(".")
        self.mn = ""; self.ops = []; self.mods = []
        self.w = set(); self.r = set()
        self.kind = "none"
        if self.label or self.directive or not t: return
        sp = t.split(None, 1)
        self.mn = mn = sp[0]
        base = re.sub(r'_(e32|e64|dpp|sdwa)$', '', mn)
        self.base = base
        if len(sp) > 1: self.ops, self.mods = split_ops(sp[1])
        ops = self.ops
        R = lambda i: regs_of(ops[i]) if i < len(ops) else set()
        allr = lambda a: set().union(*[regs_of(o) for o in ops[a:]]) if len(ops) > a else set()
        if mn.startswith("v_mfma") or mn.startswith("v_smfmac"):
            self.kind = "mfma"; self.w = R(0); self.r = allr(1)
            self.A, self.B, self.C = R(1), R(2), R(3)
            self.passes = 8 if "32x32x16" in mn else (4 if "16x16x32" in mn else 16)
        elif mn.startswith("v_"):
            self.kind = "valu"
            if base.startswith("v_cmpx"):
                self.w = R(0) | regs_of("exec"); self.r = allr(1)
            elif base.startswith("v_cmp"):
                self.w = R(0); self.r = allr(1)
            elif base in ("v_add_co_u32","v_sub_co_u32","v_subrev_co_u32","v_addc_co_u32","v_subb_co_u32","v_div_scale_f32","v_mad_u64_u32"):
                self.w = R(0) | R(1); self.r = allr(2)
            elif base.startswith("v_permlane") and "swap" in base:
                self.w = R(0) | R(1); self.r = R(0) | R(1)
            elif base in ("v_swap_b32",):
                self.w = R(0) | R(1); self.r = R(0) | R(1)
            else:
                self.w = R(0); self.r = allr(1)
                if base.startswith("v_fmac") or base.startswith("v_dot2c") or base.startswith("v_mac") or base == "v_writelane_b32" or base.startswith("v_pk_fmac"):
                    self.r |= R(0)
                if base == "v_cndmask_b32" and len(ops) == 3: self.r |= regs_of("vcc")
                if base == "v_div_fmas_f32": self.r |= regs_of("vcc")
            self.dpp = mn.endswith("_dpp") or any(m.startswith(("row_", "quad_perm", "wave_", "row_bcast", "row_mirror","row_half_mirror")) for m in self.mods)
            if self.dpp: self.r |= R(0)
            self.trans = base in TRANS
        elif mn.startswith("buffer_") or mn.startswith("global_") or mn.startswith("flat_") or mn.startswith("scratch_"):
            self.kind = "vmem"
            lds = "lds" in self.mods or "_lds_" in mn
            self.lds = lds
            if mn.startswith("buffer_wb") or mn.startswith("buffer_inv"):
                pass
            elif "store" in mn or "atomic" in mn:
                self.r = allr(0)
                if mn.startswith("buffer_"): self.data = R(0)
                else: self.data = R(1)
                if "atomic" in mn and "sc0" in self.mods:
                    self.w = R(0)
                self.wide = any(x in mn for x in ("x3", "x4"))
            elif lds:
                self.r = allr(0) | regs_of("m0")
            else:
                self.w = R(0); self.r = allr(1)
        elif mn.startswith("ds_"):
            self.kind = "ds"
            if "read" in mn or "bpermute" in mn or "permute" in mn or "swizzle" in mn or "rtn" in mn:
                self.w = R(0); self.r = allr(1)
            else:
                self.r = allr(0)
        elif mn.startswith("s_"):
            self.kind = "salu"
            if mn.startswith(("s_cmp", "s_bitcmp", "s_cbranch", "s_branch", "s_waitcnt", "s_nop", "s_barrier", "s_endpgm", "s_setprio", "s_sleep", "s_setpc")):
                self.r = allr(0)
            else:
                self.w = R(0); self.r = allr(1)
                if "saveexec" in mn: self.w |= regs_of("exec")
    def states(self):
        if self.kind == "none": return 0
        if self.mn == "s_nop": return int(self.ops[0], 0) + 1
        return 1

def vg(s): return {x for x in s if x[0] in "va"}
def sg(s): return {x for x in s if x[0] == "s"}

def required(p, c):
    need = 0
    if p.kind == "valu":
        if c.kind == "mfma" and vg(p.w) & c.r: need = max(need, 2)
        if c.kind == "mfma" and ("s", 126) in p.w: need = max(need, 4)
        if c.kind == "valu":
            if p.trans and not c.trans and vg(p.w) & c.r: need = max(need, 1)
            if p.trans and c.trans and vg(p.w) & c.r: need = max(need, 1)
            if c.dpp and vg(p.w) & c.r: need = max(need, 2)
            if c.dpp and ("s", 126) in p.w: need = max(need, 5)
            if c.base.startswith("v_permlane") and vg(p.w) & c.r: need = max(need, 2)
            if c.base.startswith("v_permlane") and ("s", 126) in p.w: need = max(need, 4)
            if c.base in ("v_readlane_b32", "v_readfirstlane_b32") and vg(p.w) & c.r: need = max(need, 1)
            if c.base in ("v_readlane_b32", "v_readfirstlane_b32", "v_writelane_b32") and ("s",126) in p.w: need = max(need, 4)
            if sg(p.w) & c.r:
                need = max(need, 2)
                if c.base in ("v_readlane_b32", "v_writelane_b32", "v_div_fmas_f32"): need = max(need, 4)
            if ("op_sel" in " ".join(p.mods) or p.mn.endswith("sdwa")) and vg(p.w) & (c.r | c.w): need = max(need, 1)
        if c.kind == "vmem" and sg(p.w) & c.r: need = max(need, 5)
        if c.kind == "salu" and sg(p.w) & c.r: need = max(need, 1)
        if c.kind == "salu" and c.mn.startswith("s_cbranch_vcc") and ("s",106) in p.w: need = max(need, 1)
    if p.kind == "salu":
        if ("s", 124) in p.w and c.kind == "vmem" and getattr(c, "lds", False): need = max(need, 1)
        if ("s", 124) in p.w and c.kind == "ds" and "addtid" in c.mn: need = max(need, 1)
    if p.kind == "vmem" and getattr(p, "wide", False):
        if c.kind == "valu" and p.data & c.w: need = max(need, 2)
        elif c.kind in ("ds", "vmem", "mfma") and p.data & c.w: need = max(need, 1)
    if p.kind == "mfma":
        n = p.passes
        ab = {2: 5, 4: 8, 8: 12, 16: 20}[n]
        ov = {2: 4, 4: 6, 8: 10, 16: 18}[n]
        if c.kind == "mfma":
            if p.w & (c.A | c.B): need = max(need, ab)
            if p.w & c.C:
                if p.w == c.C and p.passes == c.passes: need = max(need, 2 if n == 2 else 0)
                else: need = max(need, ov)
            elif p.w & c.w: need = max(need, ov)
        elif c.kind in ("valu", "vmem", "ds"):
            if p.w & (c.r | c.w): need = max(need, ab)
        if c.kind == "valu" and p.C & c.w:
            need = max(need, {2: 1, 4: 3, 8: 7, 16: 15}[n])
    return need

def fix_hazards(lines, verbose=False):
    ins = [Ins(l) for l in lines]
    changed = True
    total = 0
    while changed:
        changed = False
        labels = {x.label: i for i, x in enumerate(ins) if x.label}
        preds = [[] for _ in ins]
        for i, x in enumerate(ins):
            fall = True
            if x.mn in ("s_branch",): fall = False
            if x.mn in ("s_endpgm", "s_setpc_b64"): fall = False
            if x.mn.startswith("s_cbranch") or x.mn == "s_branch":
                t = x.ops[0]
                if t in labels: preds[labels[t]].append(i)
            if fall and i + 1 < len(ins): preds[i + 1].append(i)
        for i, c in enumerate(ins):
            if c.kind in ("none",): continue
            worst = 0
            stack = [(p, 0) for p in preds[i]]
            seen = {}
            while stack:
                j, d = stack.pop()
                if d >= 20: continue
                if seen.get(j, 99) <= d: continue
                seen[j] = d
                p = ins[j]
                if p.kind != "none":
                    need = required(p, c)
                    if need > d: worst = max(worst, need - d)
                nd = d + p.states()
                for q in preds[j]: stack.append((q, nd))
            if worst > 0:
                if verbose: print("hazard: insert", worst, "before", c.text.strip())
                new = []
                k = worst
                while k > 0:
                    n = min(k, 16); new.append(Ins(f"    s_nop {n-1}")); k -= n
                ins[i:i] = new
                total += 1
                changed = True
                break
    return [x.text for x in ins], total

def fix_hazards_fast(lines, verbose=False):
    ins = [Ins(l) for l in lines]
    total = 0
    while True:
        labels = {x.label: i for i, x in enumerate(ins) if x.label}
        preds = [[] for _ in ins]
        for i, x in enumerate(ins):
            fall = x.mn not in ("s_branch", "s_endpgm", "s_setpc_b64")
            if x.mn.startswith("s_cbranch") or x.mn == "s_branch":
                t = x.ops[0]
                if t in labels: preds[labels[t]].append(i)
            if fall and i + 1 < len(ins): preds[i + 1].append(i)
        fixes = []
        lastfix = -100
        for i, c in enumerate(ins):
            if c.kind == "none": continue
            if i - lastfix < 24: continue
            worst = 0
            stack = [(p, 0) for p in preds[i]]
            seen = {}
            while stack:
                j, d = stack.pop()
                if d >= 20: continue
                if seen.get(j, 99) <= d: continue
                seen[j] = d
                p = ins[j]
                if p.kind != "none":
                    need = required(p, c)
                    if need > d: worst = max(worst, need - d)
                nd = d + p.states()
                for q in preds[j]: stack.append((q, nd))
            if worst > 0:
                fixes.append((i, worst)); lastfix = i
        if not fixes: break
        for i, worst in reversed(fixes):
            if verbose: print("hazard: insert", worst, "before", ins[i].text.strip())
            new = []
            k = worst
            while k > 0:
                n = min(k, 16); new.append(Ins(f"    s_nop {n-1}")); k -= n
            ins[i:i] = new
            total += 1
    return [x.text for x in ins], total

class Asm:
    def __init__(self):
        self.L = []
        self.hdr = []
        self.kds = []
        self._lbl = 0
        self._start = 0
    def __call__(self, s):
        for line in s.split("\n"):
            line = line.strip()
            if line:
                self.L.append(("" if line.endswith(":") else "    ") + line)
    def label(self, l):
        self.L.append(l + ":")
    def newlabel(self, p="L"):
        self._lbl += 1
        return f"{p}_{self._lbl}"
    def launch(self, kernel, grid, block, lds):
        self.hdr.append(f"; @launch kernel={kernel} grid=({grid[0]},{grid[1]},{grid[2]}) block=({block[0]},{block[1]},{block[2]}) lds={lds}")
    def begin_kernel(self, name):
        self.L.append(".globl " + name)
        self.L.append(".p2align 8")
        self.L.append(f".type {name},@function")
        self._start = len(self.L)
        self.L.append(name + ":")
    def end_kernel(self, name, vgpr, accum, sgpr=102, kernarg=120, fix=True, verbose=False):
        if fix:
            body, n = fix_hazards_fast(self.L[self._start:], verbose)
            self.L[self._start:] = body
        mv = ma = ms = -1
        for l in self.L[self._start:]:
            x = Ins(l)
            for f, i in x.r | x.w:
                if f == "v": mv = max(mv, i)
                elif f == "a": ma = max(ma, i)
                elif f == "s" and i < 102: ms = max(ms, i)
        assert mv < accum, f"{name}: v{mv} >= accum_offset {accum}"
        assert accum + ma < vgpr or ma < 0, f"{name}: a{ma} beyond allocation"
        assert ms < sgpr
        self.kds.append(f""".amdhsa_kernel {name}
  .amdhsa_next_free_vgpr {vgpr}
  .amdhsa_next_free_sgpr {sgpr}
  .amdhsa_accum_offset {accum}
  .amdhsa_group_segment_fixed_size 0
  .amdhsa_kernarg_size {kernarg}
  .amdhsa_user_sgpr_count 2
  .amdhsa_user_sgpr_kernarg_segment_ptr 1
  .amdhsa_system_sgpr_workgroup_id_x 1
.end_amdhsa_kernel""")
    def text(self, prefix=""):
        out = [prefix.rstrip("\n")] if prefix else []
        out += self.hdr
        out += ['.amdgcn_target "amdgcn-amd-amdhsa--gfx950"', ".text"]
        out += self.L
        out += ['.section .rodata,"a"']
        for kd in self.kds:
            out += [".p2align 6", kd]
        return "\n".join(out) + "\n"
```

```python
from gen import *

S = [16, 32]; NEGM = 48; P = [64, 72]; T = 80; VL = 88; VSA = 89; VSB = 90; VQH = 91; VNINF = 92
VB = 3
OA = 0; QA = 64
def ring(i):
    i %= 16
    return R4("a", 96 + 4*i) if i < 8 else R4("v", 96 + 4*(i-8))
D = 6
SLOT = 32768; NSLOT = 5

def rd(m, r):
    pos = r & 1
    if m < 8: off = pos*8192 + m*1024
    else:
        s, db = (m-8)//4, (m-8) % 4
        off = 16384 + pos*8192 + (db*2+s)*1024
    return f"ds_read_b128 {ring(m)}, v{VB} offset:{off}"

def adv_slot():
    return ["s_add_u32 s30, s30, 0x8000", f"s_cmp_eq_u32 s30, {SLOT*NSLOT}", "s_cselect_b32 s30, 0, s30", f"v_add_u32 v{VB}, s30, v2"]

def softmax_ops(p):
    G = [[] for _ in range(16)]
    eg = [0,0,1,1] + list(range(2,14))
    t = lambda i: T + (i % 8)
    for i in range(16): G[eg[i]].append(f"v_exp_f32 v{t(i)}, v{S[p]+i}")
    G[1].append(f"v_add_f32 v{VSA}, v{t(0)}, v{t(1)}")
    G[2].append(f"v_add_f32 v{VSB}, v{t(2)}, v{t(3)}")
    for i in range(4, 16):
        d = VSA if i % 2 == 0 else VSB
        G[eg[i]+1].append(f"v_add_f32 v{d}, v{d}, v{t(i)}")
    cg = [3, 5, 5, 7, 9, 11, 13, 15]
    cg = [3, 3, 5, 7, 9, 11, 13, 15]
    for k in range(8):
        G[cg[k]].append(f"v_cvt_pk_bf16_f32 v{P[p]+k}, v{t(2*k)}, v{t(2*k+1)}")
    G[14].append(f"v_add_f32 v{VSA}, v{VSA}, v{VSB}")
    G[14].append(f"v_cmp_ngt_f32 vcc, s38, v{VSA}")
    return G

class Attn:
    def __init__(self, a, name):
        self.a = a; self.name = name; self.stubs = []
    def check(self, p):
        a = self.a
        st = a.newlabel(self.name + "_fb"); bk = a.newlabel(self.name + "_bk")
        self.stubs.append((st, bk, p))
        return [f"s_cbranch_vccnz {st}", f"{bk}:", f"v_add_f32 v{VL}, v{VL}, v{VSA}"]
    def step(self, r, last=False, extra=None, prebar=()):
        a = self.a
        p = r & 1
        G = softmax_ops(p)
        RI = [[] for _ in range(16)]
        for m in range(D, 16 + D):
            if last and m < 16: g = min(m - D, 6 - (15 - m)//2)
            else: g = m - D
            RI[g].append(m)
        issued = list(range(D))
        for m in range(16):
            if m % 2 == 0:
                need = m + 1
                if need in issued:
                    allowed = len(issued) - 1 - issued.index(need)
                    a(f"s_waitcnt lgkmcnt({allowed})")
                    issued = issued[issued.index(need)+1:]
            if m < 8:
                C = f"v[{NEGM}:{NEGM+15}]" if m == 0 else None
                a(mfma(S[1-p], ring(m), R4("a", QA + 4*m), C))
            else:
                s, db = (m-8)//4, (m-8) % 4
                a(mfma(OA + 16*db, ring(m), R4("v", P[1-p] + 4*s), f="a"))
            pre = []
            if last and m == 10:
                pre += ["s_waitcnt lgkmcnt(0)"] + list(prebar) + ["s_barrier"]; issued = []
            if m == 16 - D - 1 and (r & 1): pre = pre + adv_slot()[:3]
            if m == 16 - D and (r & 1): pre = pre + adv_slot()[3:]
            for l in pre: a(l)
            for mm in RI[m]:
                a(rd(mm % 16, r if mm < 16 else r + 1)); issued.append(mm)
            for l in G[m]: a(l)
            if extra:
                for l in extra[m]: a(l)
            if m == 15:
                for l in self.check(p): a(l)
    def final_step(self, r):
        a = self.a
        p = r & 1
        for m in range(8, 16): a(rd(m, r))
        if r & 1:
            for l in adv_slot(): a(l)
        for m in range(8, 16): a(rd(m, r + 1).replace(ring(m), ring(m - 8)))
        self.mask(p)
        ops = [l for g in softmax_ops(p) for l in g]
        a("s_waitcnt lgkmcnt(8)")
        per = (len(ops) + 7)//8
        for m in range(8, 16):
            s, db = (m-8)//4, (m-8) % 4
            a(mfma(OA + 16*db, ring(m), R4("v", P[1-p] + 4*s), f="a"))
            for l in ops[(m-8)*per:(m-7)*per]: a(l)
        for l in self.check(p): a(l)
        a("s_waitcnt lgkmcnt(0)")
        for m in range(8, 16):
            s, db = (m-8)//4, (m-8) % 4
            a(mfma(OA + 16*db, ring(m-8), R4("v", P[p] + 4*s), f="a"))
    def mask(self, p):
        a = self.a
        for r0 in range(0, 16, 4):
            for r in range(r0, r0+4):
                a(f"v_cmp_le_i32 s[{44+2*(r-r0)}:{45+2*(r-r0)}], {8*(r>>2)+(r&3)}, v{VQH}")
            for r in range(r0, r0+4):
                a(f"v_cndmask_b32 v{S[p]+r}, v{VNINF}, v{S[p]+r}, s[{44+2*(r-r0)}:{45+2*(r-r0)}]")
    def rowmax(self, p, d, t):
        a = self.a; s = S[p]
        a(f"v_max3_f32 v{d}, v{s}, v{s+1}, v{s+2}")
        for i in range(3, 15, 2): a(f"v_max3_f32 v{d}, v{d}, v{s+i}, v{s+i+1}")
        a(f"v_max_f32 v{d}, v{d}, v{s+15}")
        a(f"v_mov_b32 v{t}, v{d}")
        a(f"v_permlane32_swap_b32 v{t}, v{d}")
        a(f"v_max_f32 v{d}, v{d}, v{t}")
    def fallback(self, p):
        a = self.a
        a(f"{self.name}_fallback{p}:")
        a("s_nop 15"); a("s_nop 7")
        d, f_ = T, T+1
        self.rowmax(p, d, f_)
        a(f"v_max_f32 v{d}, 0, v{d}")
        a(f"v_exp_f32 v{f_}, -v{d}")
        for i in range(16):
            a(f"v_sub_f32 v{NEGM+i}, v{NEGM+i}, v{d}")
            a(f"v_sub_f32 v{S[0]+i}, v{S[0]+i}, v{d}")
            a(f"v_sub_f32 v{S[1]+i}, v{S[1]+i}, v{d}")
        a(f"v_mul_f32 v{VL}, v{VL}, v{f_}")
        for i0 in range(0, 64, 4):
            for i in range(4): a(f"v_accvgpr_read_b32 v{T+2+i}, a{OA+i0+i}")
            for i in range(4): a(f"v_mul_f32 v{T+2+i}, v{T+2+i}, v{f_}")
            for i in range(4): a(f"v_accvgpr_write_b32 a{OA+i0+i}, v{T+2+i}")
        for g in softmax_ops(p):
            for l in g:
                if not l.startswith("v_cmp"): a(l)
        a("s_nop 3")
        a("s_setpc_b64 s[40:41]")
    def emit_stubs(self):
        a = self.a
        for st, bk, p in self.stubs:
            a(f"{st}:")
            a(f"s_call_b64 s[40:41], {self.name}_fallback{p}")
            a(f"s_branch {bk}")
        self.fallback(0); self.fallback(1)

def dma_hs():
    o = ["s_add_u32 m0, s31, s34"]
    o += [f"buffer_load_dwordx4 v2, s[12:15], s32 offen offset:{i*1024} lds" for i in range(4)]
    o += ["s_add_u32 m0, m0, 0x4000"]
    o += [f"buffer_load_dwordx4 v2, s[12:15], s33 offen offset:{i*1024} lds" for i in range(4)]
    o += ["s_add_u32 s32, s32, 0x4000", "s_add_u32 s33, s33, 0x4000",
          "s_add_u32 s31, s31, 0x8000", f"s_cmp_eq_u32 s31, {SLOT*NSLOT}", "s_cselect_b32 s31, 0, s31"]
    return o

def k_attn(a, name="attn_kernel"):
    a.launch(name, (256,1,1), (512,1,1), 163840)
    a.begin_kernel(name)
    A = Attn(a, name)
    a(f"s_cmp_ge_u32 s2, 256")
    a(f"s_cbranch_scc1 {name}_done")
    load_srds(a, [("wq", 8), ("ws", 12)])
    a(f"""
    v_and_b32 v1, 63, v0
    v_lshrrev_b32 v4, 6, v0
    v_lshlrev_b32 v2, 4, v1
    v_readfirstlane_b32 s24, v4        ; wave
    s_and_b32 s25, s2, 7
    s_lshl_b32 s25, s25, 2
    s_bfe_u32 s26, s2, 0x20003
    s_add_u32 s25, s25, s26            ; head
    s_lshr_b32 s26, s2, 5              ; j
    s_and_b32 s27, s24, 3              ; ws
    s_lshr_b32 s28, s24, 2             ; role
    s_sub_u32 s37, 15, s26             ; GX
    s_cmp_eq_u32 s28, 0
    s_cselect_b32 s36, s37, s26
    s_lshl_b32 s29, s36, 2
    s_add_u32 s29, s29, s27            ; strip
    s_lshl_b32 s34, s27, 12
    s_mov_b32 s38, {f32hex(2.0**40)}
    v_lshrrev_b32 v13, 4, v1
    v_and_b32 v12, 15, v1
    v_lshlrev_b32 v14, 2, v13
    v_xor_b32 v14, v14, v12
    v_lshlrev_b32 v14, 4, v14
    v_lshl_add_u32 v14, v13, 13, v14
    """)
    for i in range(4): a(f"v_add_u32 v{8+i}, {i*4*8192 - i*1024}, v14")
    a(f"""
    s_lshl_b32 s42, s24, 17            ; 16w*8192
    s_lshl_b32 s43, s25, 8
    s_add_u32 s42, s42, s43            ; W soffset
    s_lshl_b32 s43, s24, 12
    s_add_u32 s43, s43, 0x8000
    s_lshl_b32 s44, s29, 15
    s_add_u32 s44, s44, {WS_H1}
    """)
    for c in range(4):
        a("s_mov_b32 m0, s43")
        for i in range(4): a(f"buffer_load_dwordx4 v{8+i}, s[8:11], s42 offen offset:{i*1024} lds")
        for hh in range(2):
            for i in range(4):
                fr = c*8 + hh*4 + i
                a(f"buffer_load_dwordx4 a[{4*fr}:{4*fr+3}], v2, s[12:15], s44 offen offset:{i*1024}")
            a("s_add_u32 s44, s44, 4096")
        a(f"s_add_u32 s42, s42, {128*8192}")
        a("s_add_u32 s43, s43, 0x8000")
    a(f"""
    s_lshl_b32 s32, s25, 19
    s_add_u32 s32, s32, s34
    s_add_u32 s33, s32, {WS_V - 8192}
    s_add_u32 s45, s32, {WS_K}
    s_add_u32 s32, s32, {WS_K + 8192}
    s_mov_b32 s31, 0
    s_mov_b32 s30, 0
    s_cmp_eq_u32 s28, 0
    s_cbranch_scc1 {name}_nohs0
    s_mov_b32 s46, s33
    s_cmp_lt_u32 s27, 2
    s_cselect_b32 s33, s45, s33
    """)
    for l in dma_hs(): a(l)
    a("s_add_u32 s33, s46, 0x4000")
    a(f"{name}_nohs0:")
    a(f"""
    v_lshrrev_b32 v13, 5, v1           ; h
    v_bfe_u32 v12, v1, 2, 2            ; r
    v_and_b32 v14, 3, v1               ; c
    v_bfe_u32 v15, v1, 4, 1            ; nh
    v_lshlrev_b32 v14, 3, v14
    v_lshl_add_u32 v14, v15, 5, v14
    v_lshl_add_u32 v15, v13, 3, v12
    v_lshl_add_u32 v14, v15, 8, v14
    v_add_u32 v14, 0x8000, v14
    """)
    for db in range(4):
        a(f"v_xor_b32 v15, {db}, v12")
        a(f"v_lshl_add_u32 v{112+db}, v15, 6, v14")
    def wreads(ks, p):
        o = []
        for db in range(4):
            for jj in range(2):
                b = 80 + 16*p + 4*db + 2*jj
                o.append(f"ds_read_b64_tr_b16 v[{b}:{b+1}], v{112+db} offset:{ks*4096 + jj*1024}")
        return o
    NX = [36, 24, 12, 0]; NY = [44, 32, 28, 24]
    for c in range(4):
        lx = a.newlabel(name + "_qx"); lj = a.newlabel(name + "_qj")
        a(f"s_cmp_eq_u32 s28, 0")
        a(f"s_cbranch_scc1 {lx}")
        a(f"s_waitcnt vmcnt({NY[c]})")
        a("s_barrier")
        if c in (1, 2):
            for l in dma_hs(): a(l)
        a(f"s_branch {lj}")
        a(f"{lx}:")
        a(f"s_waitcnt vmcnt({NX[c]})")
        a("s_barrier")
        a(f"{lj}:")
        for l in wreads(0, 0): a(l)
        for ks in range(8):
            p = ks & 1
            nxt = wreads(ks+1, 1-p) if ks < 7 else []
            a("s_waitcnt lgkmcnt(0)")
            for db in range(4):
                C = "0" if (c == 0 and ks == 0) else None
                a(mfma(16 + 16*db, R4("v", 80 + 16*p + 4*db), R4("a", 4*(c*8+ks)), C))
                for l in nxt[2*db:2*db+2]: a(l)
        if c < 3:
            for db in range(4): a(f"v_add_u32 v{112+db}, 0x8000, v{112+db}")
    a(f"s_mov_b32 s42, {f32hex(128**-0.5 * LOG2E)}")
    for db in range(4):
        for i in range(16): a(f"v_mul_f32 v{16+16*db+i}, s42, v{16+16*db+i}")
        for i in range(8): a(f"v_cvt_pk_bf16_f32 v{80+i}, v{16+16*db+2*i}, v{16+16*db+2*i+1}")
        for i in range(8): a(f"v_accvgpr_write_b32 a{QA+8*db+i}, v{80+i}")
    a("s_waitcnt vmcnt(0)")
    a("s_barrier")
    a(f"v_mov_b32 v{VB}, v2")
    for m in range(8): a(f"ds_read_b128 {ring(m+8)}, v{VB} offset:{16384 + m*1024}")
    for m in range(D): a(rd(m, 0))
    for i in range(64): a(f"v_accvgpr_write_b32 a{OA+i}, 0")
    for i in range(8): a(f"v_mov_b32 v{P[1]+i}, 0")
    a(f"""
    v_mov_b32 v{VL}, 0
    v_mov_b32 v{VNINF}, 0xff800000
    v_and_b32 v{VQH}, 31, v1
    v_lshrrev_b32 v4, 5, v1
    v_lshlrev_b32 v4, 2, v4
    v_sub_u32 v{VQH}, v{VQH}, v4
    s_waitcnt lgkmcnt({D})
    """)
    for m in range(8): a(mfma(S[0], ring(m+8), R4("a", QA+4*m), "0" if m == 0 else None))
    a(f"s_cmp_eq_u32 s29, 0")
    a(f"s_cbranch_scc0 {name}_nomask0")
    A.mask(0)
    a(f"{name}_nomask0:")
    A.rowmax(0, T, T+1)
    for i in range(16):
        a(f"v_sub_f32 v{S[0]+i}, v{S[0]+i}, v{T}")
        a(f"v_sub_f32 v{NEGM+i}, 0, v{T}")
    a("s_mov_b32 s35, 0")
    a(f"s_cmp_eq_u32 s28, 0")
    a(f"s_cbranch_scc0 {name}_ystart")
    a(f"{name}_xloop:")
    for r in range(4): A.step(r, last=(r == 3))
    a("s_add_u32 s35, s35, 1")
    a("s_cmp_lt_u32 s35, s36")
    a(f"s_cbranch_scc1 {name}_xloop")
    a(f"s_branch {name}_tail")
    a(f"{name}_ystart:")
    a("s_cmp_eq_u32 s36, 0")
    a(f"s_cbranch_scc1 {name}_ytail")
    a(f"{name}_yloop:")
    for r in range(4):
        ex = None
        if r < 2:
            d = dma_hs()
            grp = [d[0:2], d[2:3], d[3:4], d[4:5], d[5:7], d[7:8], d[8:9], d[9:10], d[10:12], d[12:15]]
            ex = [[] for _ in range(16)]
            for i, g in enumerate(grp): ex[[0,2,3,4,5,6,7,8,11,12][i]] += g
        A.step(r, last=(r == 3), extra=ex, prebar=["s_waitcnt vmcnt(0)"])
    a("s_add_u32 s35, s35, 1")
    a("s_cmp_lt_u32 s35, s36")
    a(f"s_cbranch_scc1 {name}_yloop")
    a(f"{name}_ytail:")
    for l in dma_hs() + dma_hs(): a(l)
    a(f"{name}_tail:")
    for r in range(4):
        if r < 3:
            a(f"s_cmp_eq_u32 s27, {r}")
            a(f"s_cbranch_scc1 {name}_fin{r}")
            A.step(r)
    for r in (3, 2, 1, 0):
        a(f"{name}_fin{r}:")
        A.final_step(r)
        if r != 0: a(f"s_branch {name}_tdone")
    a(f"{name}_tdone:")
    a(f"s_cmp_eq_u32 s28, 0")
    a(f"s_cbranch_scc1 {name}_epi")
    a("s_add_u32 s35, s36, 1")
    a("s_waitcnt vmcnt(0)")
    a("s_barrier")
    a("s_cmp_ge_u32 s35, s37")
    a(f"s_cbranch_scc1 {name}_epi")
    for l in dma_hs() + dma_hs(): a(l)
    a(f"{name}_epi:")
    a(f"""
    v_mov_b32 v{T}, v{VL}
    s_nop 1
    v_permlane32_swap_b32 v{T}, v{VL}
    v_add_f32 v{VL}, v{VL}, v{T}
    v_rcp_f32 v{VL}, v{VL}
    s_lshl_b32 s42, s29, 18
    s_lshl_b32 s43, s25, 13
    s_add_u32 s42, s42, s43
    s_add_u32 s42, s42, {WS_CTX}
    """)
    for f_ in range(8):
        t = 16 + 12*(f_ % 4)
        for i in range(8): a(f"v_accvgpr_read_b32 v{t+i}, a{OA+8*f_+i}")
        for i in range(8): a(f"v_mul_f32 v{t+i}, v{t+i}, v{VL}")
        for i in range(4): a(f"v_cvt_pk_bf16_f32 v{t+8+i}, v{t+2*i}, v{t+2*i+1}")
        a(f"buffer_store_dwordx4 v[{t+8}:{t+11}], v2, s[12:15], s42 offen offset:{(f_%4)*1024}")
        if f_ == 3: a("s_add_u32 s42, s42, 4096")
    a(f"s_cmp_eq_u32 s28, 0")
    a(f"s_cbranch_scc1 {name}_done")
    a(f"{name}_p2:")
    a("s_cmp_ge_u32 s35, s37")
    a(f"s_cbranch_scc1 {name}_done")
    a("s_add_u32 s35, s35, 1")
    a("s_cmp_ge_u32 s35, s37")
    a(f"s_cbranch_scc1 {name}_p2last")
    a("s_waitcnt vmcnt(8)")
    a("s_barrier")
    for l in dma_hs() + dma_hs(): a(l)
    a(f"s_branch {name}_p2")
    a(f"{name}_p2last:")
    a("s_waitcnt vmcnt(0)")
    a("s_barrier")
    a(f"{name}_done:")
    a("s_endpgm")
    A.emit_stubs()
    a.end_kernel(name, 256, 128)
```

```python
from gen import *

def k_gemm64(a, name, a_off, nks, wname, gate_idx, res_ws, res_off, out_ws, out_off, PD=4):
    n = nks // 8
    RS = 17408
    a.launch(name, (256,1,1), (512,1,1), 8*RS)
    a.begin_kernel(name)
    a(f"s_cmp_ge_u32 s2, 256")
    a(f"s_cbranch_scc1 {name}_done")
    load_srds(a, [(wname, 8), ("ws", 12), ("x", 16), ("out", 20)])
    rs = 12 if res_ws else 16
    os_ = 12 if out_ws else 20
    a(f"""
    v_and_b32 v1, 63, v0
    v_lshrrev_b32 v4, 6, v0
    v_lshlrev_b32 v2, 4, v1
    v_readfirstlane_b32 s24, v4        ; wave
    s_and_b32 s25, s2, 7
    s_lshl_b32 s25, s25, 2
    s_bfe_u32 s26, s2, 0x20003
    s_add_u32 s25, s25, s26
    s_lshr_b32 s26, s2, 5
    s_mul_i32 s27, s25, {2*nks*1024}
    s_mul_i32 s29, s24, {n*1024}
    s_add_u32 s27, s27, s29
    s_add_u32 s27, s27, {a_off}
    s_add_u32 s28, s27, {nks*1024}
    s_mul_i32 s29, s24, {16*n*1024}
    s_lshl_b32 s30, s26, 7
    s_add_u32 s29, s29, s30
    s_mul_i32 s30, s24, {RS}
    v_lshrrev_b32 v6, 3, v1
    v_and_b32 v7, 7, v1
    v_bfe_u32 v8, v1, 4, 1
    v_lshlrev_b32 v8, 2, v8
    v_xor_b32 v7, v7, v8
    v_lshlrev_b32 v7, 4, v7
    v_lshl_add_u32 v4, v6, 10, v7
    v_add_u32 v5, {8*1024 - 1024}, v4
    """)
    AF = lambda s, st: 32 + 8*(s % (PD+1)) + 4*st
    def loads(s):
        o = [f"s_add_u32 m0, s30, {(s % (PD+1))*2048}",
             f"buffer_load_dwordx4 v4, s[8:11], s29 offen lds",
             f"buffer_load_dwordx4 v5, s[8:11], s29 offen offset:1024 lds",
             f"buffer_load_dwordx4 {R4('v', AF(s,0))}, v2, s[12:15], s27 offen offset:{(s%4)*1024}",
             f"buffer_load_dwordx4 {R4('v', AF(s,1))}, v2, s[12:15], s28 offen offset:{(s%4)*1024}",
             f"s_add_u32 s29, s29, {16*1024}"]
        if s % 4 == 3: o += ["s_add_u32 s27, s27, 4096", "s_add_u32 s28, s28, 4096"]
        return o
    a(f"""
    v_lshrrev_b32 v10, 3, v0
    v_and_b32 v11, 7, v0               ; cc
    s_lshl_b32 s31, s25, 16
    s_lshl_b32 s32, s26, 7
    s_add_u32 s31, s31, s32
    v_lshlrev_b32 v12, 10, v10
    v_lshl_add_u32 v12, v11, 4, v12
    s_add_u32 s32, s31, {res_off}
    buffer_load_dwordx4 v[16:19], v12, s[{rs}:{rs+3}], s32 offen
    v_lshlrev_b32 v13, 5, v11
    s_lshl_b32 s33, s26, 8
    s_add_u32 s33, s33, {WS_MOD + gate_idx*2048}
    buffer_load_dwordx4 v[20:23], v13, s[12:15], s33 offen
    buffer_load_dwordx4 v[24:27], v13, s[12:15], s33 offen offset:16
    """)
    for s in range(PD):
        for l in loads(s): a(l)
    a(f"""
    v_lshrrev_b32 v8, 5, v1            ; hh
    v_bfe_u32 v9, v1, 2, 2             ; r
    v_lshl_add_u32 v8, v8, 2, v9       ; 4hh + r
    v_lshlrev_b32 v8, 7, v8
    v_and_b32 v14, 3, v1
    v_lshl_add_u32 v8, v14, 3, v8
    v_bfe_u32 v14, v1, 4, 1
    v_lshl_add_u32 v8, v14, 5, v8
    v_add_u32 v8, s30, v8
    v_lshrrev_b32 v9, 1, v9            ; r>>1
    v_lshl_add_u32 v6, v9, 6, v8
    v_xor_b32 v7, 64, v6
    """)
    assert RS % 128 == 0
    WF = lambda s, cb: 80 + 8*(s % 2) + 4*cb
    def reads(s):
        o = []
        for cb in range(2):
            for jj in range(2):
                b = WF(s, cb) + 2*jj
                o.append(f"ds_read_b64_tr_b16 v[{b}:{b+1}], v{6+cb} offset:{(s % (PD+1))*2048 + jj*1024}")
        return o
    a(f"s_waitcnt vmcnt({4*(PD-1)})")
    for l in reads(0): a(l)
    for s in range(n):
        if s + PD < n:
            for l in loads(s + PD): a(l)
        if s + 1 < n:
            last_issued = min(s + PD, n - 1)
            a(f"s_waitcnt vmcnt({4*(last_issued - (s+1))})")
            for l in reads(s+1): a(l)
            a("s_waitcnt lgkmcnt(4)")
        else:
            a("s_waitcnt lgkmcnt(0)")
        for cb in range(2):
            for st in range(2):
                a(mfma(16*(cb*2+st), R4("v", WF(s, cb)), R4("v", AF(s, st)), "0" if s == 0 else None, f="a"))
    a(f"""
    v_and_b32 v8, 31, v1
    v_mul_u32_u24 v8, 272, v8
    v_lshrrev_b32 v9, 5, v1
    v_lshl_add_u32 v8, v9, 4, v8
    v_add_u32 v8, s30, v8
    """)
    for cb in range(2):
        for st in range(2):
            for q in range(4):
                b = 16*(cb*2+st) + 4*q
                a(f"ds_write_b128 v8, a[{b}:{b+3}] offset:{st*32*272 + cb*128 + q*32}")
    a(f"""
    v_mul_u32_u24 v8, 272, v10
    v_lshl_add_u32 v8, v11, 5, v8
    v_add_u32 v9, {4*RS}, v8
    s_waitcnt lgkmcnt(0)
    s_barrier
    """)
    for w in range(8):
        a(f"ds_read_b128 v[{32+8*w}:{35+8*w}], v{8 + w//4} offset:{(w%4)*RS}")
        a(f"ds_read_b128 v[{36+8*w}:{39+8*w}], v{8 + w//4} offset:{(w%4)*RS + 16}")
    unpack8(a, 100, 16)
    for w in range(1, 8):
        a(f"s_waitcnt lgkmcnt({14 - 2*w})")
        for i in range(8): a(f"v_add_f32 v{32+i}, v{32+i}, v{32+8*w+i}")
    for i in range(0, 8, 2): rbf2(a, 32+i, 33+i, 32+i, 33+i, 9)
    for i in range(8): a(f"v_mul_f32 v{32+i}, v{32+i}, v{20+i}")
    for i in range(0, 8, 2): rbf2(a, 32+i, 33+i, 32+i, 33+i, 9)
    for i in range(8): a(f"v_add_f32 v{32+i}, v{32+i}, v{100+i}")
    for i in range(4): a(f"v_cvt_pk_bf16_f32 v{40+i}, v{32+2*i}, v{33+2*i}")
    a(f"s_add_u32 s32, s31, {out_off}")
    a(f"buffer_store_dwordx4 v[40:43], v12, s[{os_}:{os_+3}], s32 offen")
    a(f"{name}_done:")
    a("s_endpgm")
    a.end_kernel(name, 176, 112)

def k_ffn1(a, name="ffn1_kernel", NST=4):
    a.launch(name, (224,1,1), (512,1,1), NST*32768)
    a.begin_kernel(name)
    a(f"s_cmp_ge_u32 s2, 224")
    a(f"s_cbranch_scc1 {name}_done")
    load_srds(a, [("w1", 8), ("ws", 12), ("b1", 16)])
    a(f"""
    v_and_b32 v1, 63, v0
    v_lshrrev_b32 v4, 6, v0
    v_lshlrev_b32 v2, 4, v1
    v_readfirstlane_b32 s24, v4        ; wave
    s_and_b32 s25, s2, 7
    s_lshl_b32 s25, s25, 1
    s_bfe_u32 s26, s2, 0x10003
    s_add_u32 s25, s25, s26
    s_lshr_b32 s26, s2, 4
    s_lshl_b32 s27, s25, 2
    s_lshr_b32 s28, s24, 1
    s_add_u32 s27, s27, s28
    s_lshl_b32 s27, s27, 15
    s_and_b32 s29, s24, 1
    s_lshl_b32 s29, s29, 11
    s_add_u32 s27, s27, s29
    s_add_u32 s27, s27, {WS_H2}
    s_mul_i32 s28, s24, {8*3584}
    s_lshl_b32 s29, s26, 8
    s_add_u32 s28, s28, s29
    s_lshl_b32 s30, s24, 11            ; LDS w*2048
    v_lshrrev_b32 v13, 4, v1
    v_and_b32 v12, 15, v1
    v_lshlrev_b32 v14, 2, v13
    v_xor_b32 v14, v14, v12
    v_lshlrev_b32 v14, 4, v14
    v_mul_u32_u24 v13, 3584, v13
    v_add_u32 v4, v13, v14
    v_add_u32 v5, {4*3584 - 1024}, v4
    v_lshrrev_b32 v13, 5, v1
    v_lshlrev_b32 v6, 3, v13           ; 4h*2 bytes
    s_lshl_b32 s31, s26, 8
    s_lshr_b32 s32, s24, 1
    s_lshl_b32 s32, s32, 6
    s_add_u32 s31, s31, s32
    """)
    for q in range(4): a(f"buffer_load_dwordx2 v[{16+2*q}:{17+2*q}], v6, s[16:19], s31 offen offset:{16*q}")
    def loads(c):
        b = (c % NST)*32768
        return [f"s_add_u32 m0, s30, {b}",
                f"buffer_load_dwordx4 v2, s[12:15], s27 offen lds",
                f"buffer_load_dwordx4 v2, s[12:15], s27 offen offset:1024 lds",
                f"s_add_u32 m0, s30, {b + 16384}",
                f"buffer_load_dwordx4 v4, s[8:11], s28 offen lds",
                f"buffer_load_dwordx4 v5, s[8:11], s28 offen offset:1024 lds",
                f"s_add_u32 s27, s27, 4096", f"s_add_u32 s28, s28, {64*3584}"]
    for c in range(NST - 1):
        for l in loads(c): a(l)
    a(f"""
    s_and_b32 s29, s24, 1
    s_lshl_b32 s29, s29, 13
    v_add_u32 v7, s29, v2
    v_bfe_u32 v12, v1, 2, 2            ; r
    v_and_b32 v14, 3, v1
    v_bfe_u32 v15, v1, 4, 1
    v_lshlrev_b32 v14, 3, v14
    v_lshl_add_u32 v14, v15, 5, v14
    v_lshl_add_u32 v15, v13, 3, v12    ; 8h + r
    v_lshl_add_u32 v14, v15, 8, v14
    s_lshr_b32 s29, s24, 1
    v_xor_b32 v15, s29, v12
    v_lshl_add_u32 v8, v15, 6, v14
    v_add_u32 v8, 16384, v8
    v_add_u32 v9, 65536, v7
    v_add_u32 v10, 65536, v8
    s_waitcnt vmcnt({4*(NST-1)})
    """)
    for q in range(4):
        for i in range(2):
            a(f"v_lshlrev_b32 v{32+4*q+2*i}, 16, v{16+2*q+i}")
            a(f"v_and_b32 v{33+4*q+2*i}, 0xffff0000, v{16+2*q+i}")
    def reads(c, ks, p):
        b = (c % NST)*32768
        va, vw = (7, 8) if b < 65536 else (9, 10)
        b %= 65536
        f0 = 80 + 12*p
        return [f"ds_read_b64_tr_b16 v[{f0}:{f0+1}], v{vw} offset:{b + ks*4096}",
                f"ds_read_b64_tr_b16 v[{f0+2}:{f0+3}], v{vw} offset:{b + ks*4096 + 1024}",
                f"ds_read_b128 v[{f0+4}:{f0+7}], v{va} offset:{b + ks*1024}",
                f"ds_read_b128 v[{f0+8}:{f0+11}], v{va} offset:{b + 4096 + ks*1024}"]
    for c in range(8):
        issued_last = min(c + NST - 2, 7)
        a(f"s_waitcnt vmcnt({4*(issued_last - c)})")
        a("s_barrier")
        if c + NST - 1 < 8:
            for l in loads(c + NST - 1): a(l)
        for l in reads(c, 0, 0): a(l)
        for ks in range(4):
            p = ks & 1
            f0 = 80 + 12*p
            if ks < 3:
                for l in reads(c, ks+1, 1-p): a(l)
                a("s_waitcnt lgkmcnt(4)")
            else: a("s_waitcnt lgkmcnt(0)")
            for st in range(2):
                C = "v[32:47]" if (c == 0 and ks == 0) else None
                a(mfma(48 + 16*st, R4("v", f0), R4("v", f0 + 4 + 4*st), C))
    a(f"""
    s_lshl_b32 s27, s25, 2
    s_and_b32 s29, s24, 1
    s_lshl_b32 s29, s29, 1
    s_add_u32 s27, s27, s29
    s_mul_i32 s27, s27, {112*1024}
    s_lshl_b32 s29, s26, 13
    s_add_u32 s27, s27, s29
    s_lshr_b32 s29, s24, 1
    s_lshl_b32 s29, s29, 11
    s_add_u32 s27, s27, s29
    s_add_u32 s27, s27, {WS_HID}
    s_mov_b32 s33, {f32hex(LOG2E)}
    s_mov_b32 s34, {f32hex(40.0)}
    """)
    for st in range(2):
        for s in range(2):
            h = 48 + 16*st + 8*s
            t = 16; u = 24
            for i in range(8): a(f"v_mul_f32 v{t+i}, s33, v{h+i}")
            for i in range(8): a(f"v_min_f32 v{t+i}, s34, v{t+i}")
            for i in range(8): a(f"v_exp_f32 v{t+i}, v{t+i}")
            for i in range(8): a(f"v_add_f32 v{u+i}, 2.0, v{t+i}")
            for i in range(8): a(f"v_mul_f32 v{t+i}, v{t+i}, v{u+i}")
            for i in range(8): a(f"v_add_f32 v{u+i}, 2.0, v{t+i}")
            for i in range(8): a(f"v_rcp_f32 v{u+i}, v{u+i}")
            for i in range(8): a(f"v_mul_f32 v{t+i}, v{t+i}, v{u+i}")
            for i in range(8): a(f"v_mul_f32 v{t+i}, v{t+i}, v{h+i}")
            o = 32 + 4*(2*st+s)
            for i in range(4): a(f"v_cvt_pk_bf16_f32 v{o+i}, v{t+2*i}, v{t+2*i+1}")
            a(f"buffer_store_dwordx4 v[{o}:{o+3}], v2, s[12:15], s27 offen offset:{s*1024}")
        a(f"s_add_u32 s27, s27, {112*1024}")
    a(f"{name}_done:")
    a("s_endpgm")
    a.end_kernel(name, 104, 104)
```

```python
import sys
from asmlib import Asm

NAME = "adaLN_cond__compressed_kv_cla__dense_activation_mish__prompt"
KA = dict(x=0, ckv=8, wq=16, wuk=24, wuv=32, wo=40, bx=48, w1=56, b1=64, w2=72, c=80, wmod=88, out=96, dbg=104, ws=112)
SZ = dict(x=2048*512*2, ckv=2048*512*2, wq=512*4096*2, wuk=512*4096*2, wuv=512*4096*2, wo=4096*512*2,
          w1=512*1792*2, b1=1792*2, w2=1792*512*2, c=1024, wmod=512*3072*2, out=2048*512*2, dbg=256, ws=268435456)
MB = 1 << 20
WS_MOD = 0
WS_H1 = 1 * MB
WS_X1 = 3 * MB
WS_H2 = 5 * MB
WS_HID = 7 * MB
WS_K = 16 * MB
WS_V = 32 * MB
WS_CTX = 49 * MB
LOG2E = 1.4426950408889634

import struct
def f32hex(x): return "0x%08x" % struct.unpack("<I", struct.pack("<f", x))[0]

def srd(a, d, name, ptr_s):
    a(f"s_mov_b32 s{d}, s{ptr_s}")
    a(f"s_mov_b32 s{d+1}, s{ptr_s+1}")
    a(f"s_mov_b32 s{d+2}, {SZ[name]}")
    a(f"s_mov_b32 s{d+3}, 0x20000")

def load_srds(a, lst):
    for name, d in lst:
        a(f"s_load_dwordx2 s[{d}:{d+1}], s[0:1], {KA[name]}")
    for name, d in lst:
        a(f"s_mov_b32 s{d+2}, {SZ[name]}")
        a(f"s_mov_b32 s{d+3}, 0x20000")
    a("s_waitcnt lgkmcnt(0)")

def wave_sum(a, v, t):
    for m in ("quad_perm:[1,0,3,2]", "quad_perm:[2,3,0,1]", "row_half_mirror", "row_mirror"):
        a(f"v_add_f32_dpp v{v}, v{v}, v{v} {m} row_mask:0xf bank_mask:0xf")
    a(f"v_mov_b32 v{t}, v{v}")
    a(f"v_permlane16_swap_b32 v{t}, v{v}")
    a(f"v_add_f32 v{v}, v{v}, v{t}")
    a(f"v_mov_b32 v{t}, v{v}")
    a(f"v_permlane32_swap_b32 v{t}, v{v}")
    a(f"v_add_f32 v{v}, v{v}, v{t}")

def rbf(a, d, s):
    a(f"v_cvt_pk_bf16_f32 v{d}, v{s}, v{s}")
    a(f"v_and_b32 v{d}, 0xffff0000, v{d}")

def rbf2(a, d0, d1, s0, s1, t):
    a(f"v_cvt_pk_bf16_f32 v{t}, v{s0}, v{s1}")
    a(f"v_lshlrev_b32 v{d0}, 16, v{t}")
    a(f"v_and_b32 v{d1}, 0xffff0000, v{t}")

def unpack8(a, d, s):
    for i in range(4):
        a(f"v_lshlrev_b32 v{d+2*i}, 16, v{s+i}")
        a(f"v_and_b32 v{d+2*i+1}, 0xffff0000, v{s+i}")

def k_mod(a, name="mod_kernel"):
    a.launch(name, (48,1,1), (512,1,1), 4096)
    a.begin_kernel(name)
    a(f"s_cmp_ge_u32 s2, 48")
    a(f"s_cbranch_scc1 {name}_done")
    load_srds(a, [("c", 8), ("wmod", 12), ("ws", 16)])
    a(f"""
    v_lshrrev_b32 v1, 3, v0            ; (w*8 + ksub)
    v_and_b32 v2, 7, v0                ; cc
    v_lshrrev_b32 v3, 6, v0            ; w
    v_and_b32 v4, 7, v1                ; ksub
    v_lshl_add_u32 v4, v3, 6, v4       ; k0 = 64w + ksub
    v_mul_u32_u24 v5, 6144, v4
    v_lshl_add_u32 v5, v2, 4, v5
    s_lshl_b32 s3, s2, 7
    v_lshlrev_b32 v6, 1, v4
    """)
    for i in range(8):
        a(f"s_add_u32 s20, s3, {i*8*6144}")
        a(f"buffer_load_dwordx4 v[{16+4*i}:{19+4*i}], v5, s[12:15], s20 offen")
    for i in range(8):
        a(f"buffer_load_ushort v{8+i}, v6, s[8:11], 0 offen offset:{16*i}")
    a("s_waitcnt vmcnt(0)")
    for i in range(8):
        a(f"v_lshlrev_b32 v{8+i}, 16, v{8+i}")
        a(f"v_mul_f32 v7, {f32hex(-LOG2E)}, v{8+i}")
        a(f"v_exp_f32 v7, v7")
        a(f"v_add_f32 v7, 1.0, v7")
        a(f"v_rcp_f32 v7, v7")
        a(f"v_mul_f32 v7, v7, v{8+i}")
        rbf(a, 8+i, 7)
    for j in range(8): a(f"v_mov_b32 v{48+j}, 0")
    for i in range(8):
        unpack8(a, 56, 16+4*i)
        for j in range(8):
            a(f"v_fmac_f32 v{48+j}, v{8+i}, v{56+j}")
    for j in range(8):
        a(f"v_add_f32_dpp v{48+j}, v{48+j}, v{48+j} row_ror:8 row_mask:0xf bank_mask:0xf")
    for j in range(8):
        a(f"v_mov_b32 v{56+j}, v{48+j}")
    for j in range(8):
        a(f"v_permlane16_swap_b32 v{56+j}, v{48+j}")
    for j in range(8):
        a(f"v_add_f32 v{48+j}, v{48+j}, v{56+j}")
    for j in range(8):
        a(f"v_mov_b32 v{56+j}, v{48+j}")
    for j in range(8):
        a(f"v_permlane32_swap_b32 v{56+j}, v{48+j}")
    for j in range(8):
        a(f"v_add_f32 v{48+j}, v{48+j}, v{56+j}")
    a(f"""
    v_lshlrev_b32 v7, 8, v3
    v_lshl_add_u32 v7, v2, 5, v7
    ds_write_b128 v7, v[48:51]
    ds_write_b128 v7, v[52:55] offset:16
    s_waitcnt lgkmcnt(0)
    s_barrier
    v_and_b32 v1, 63, v0
    v_lshlrev_b32 v1, 2, v1
    """)
    for w in range(8): a(f"ds_read_b32 v{16+w}, v1 offset:{256*w}")
    a("s_waitcnt lgkmcnt(0)")
    for w in range(1, 8): a(f"v_add_f32 v16, v16, v{16+w}")
    rbf(a, 16, 16)
    a(f"""
    s_lshl_b32 s3, s2, 8
    s_add_u32 s3, s3, {WS_MOD}
    v_cmp_gt_u32 vcc, 64, v0
    s_and_saveexec_b64 s[22:23], vcc
    s_cbranch_execz {name}_done
    buffer_store_dword v16, v1, s[16:19], s3 offen
    {name}_done:
    s_endpgm
    """)
    a.end_kernel(name, 64, 64)

def ln_row(a, xv, sc, sh, o, t):
    e = t
    s, u = t + 8, t + 9
    unpack8(a, e, xv)
    a(f"v_add_f32 v{s}, v{e}, v{e+1}")
    for i in range(2, 8): a(f"v_add_f32 v{s}, v{s}, v{e+i}")
    wave_sum(a, s, u)
    a(f"v_mul_f32 v{s}, {f32hex(1/512)}, v{s}")
    q, d = t + 10, t + 11
    a(f"v_sub_f32 v{d}, v{e}, v{s}")
    a(f"v_mul_f32 v{q}, v{d}, v{d}")
    for i in range(1, 8):
        a(f"v_sub_f32 v{d}, v{e+i}, v{s}")
        a(f"v_fmac_f32 v{q}, v{d}, v{d}")
    wave_sum(a, q, u)
    a(f"v_mul_f32 v{q}, {f32hex(1/512)}, v{q}")
    rbf2(a, s, q, s, q, u)
    a(f"v_add_f32 v{q}, {f32hex(1e-5)}, v{q}")
    rbf(a, q, q)
    a(f"v_sqrt_f32 v{q}, v{q}")
    rbf(a, q, q)
    a(f"v_rcp_f32 v{q}, v{q}")
    for i in range(8): a(f"v_sub_f32 v{e+i}, v{e+i}, v{s}")
    for i in range(0, 8, 2): rbf2(a, e+i, e+i+1, e+i, e+i+1, u)
    for i in range(8): a(f"v_mul_f32 v{e+i}, v{e+i}, v{q}")
    for i in range(0, 8, 2): rbf2(a, e+i, e+i+1, e+i, e+i+1, u)
    for i in range(8): a(f"v_mul_f32 v{e+i}, v{e+i}, v{sc+i}")
    for i in range(0, 8, 2): rbf2(a, e+i, e+i+1, e+i, e+i+1, u)
    for i in range(8): a(f"v_add_f32 v{e+i}, v{e+i}, v{sh+i}")
    for i in range(4): a(f"v_cvt_pk_bf16_f32 v{o+i}, v{e+2*i}, v{e+2*i+1}")

def k_ln(a, name, src_is_ws, src_off, dst_off, sidx, cidx):
    a.launch(name, (256,1,1), (512,1,1), 0)
    a.begin_kernel(name)
    a(f"s_cmp_ge_u32 s2, 256")
    a(f"s_cbranch_scc1 {name}_done")
    load_srds(a, [("x", 8), ("ws", 16)])
    src = 16 if src_is_ws else 8
    a(f"""
    v_and_b32 v1, 63, v0
    v_lshrrev_b32 v2, 6, v0
    s_lshl_b32 s3, s2, 3
    v_add_u32 v2, s3, v2              ; row
    v_lshlrev_b32 v3, 10, v2
    v_lshl_add_u32 v3, v1, 4, v3
    s_mov_b32 s20, {src_off}
    buffer_load_dwordx4 v[8:11], v3, s[{src}:{src+3}], s20 offen
    v_lshlrev_b32 v4, 5, v1
    s_mov_b32 s21, {WS_MOD + cidx*2048}
    s_mov_b32 s22, {WS_MOD + sidx*2048}
    buffer_load_dwordx4 v[12:15], v4, s[16:19], s21 offen
    buffer_load_dwordx4 v[16:19], v4, s[16:19], s21 offen offset:16
    buffer_load_dwordx4 v[20:23], v4, s[16:19], s22 offen
    buffer_load_dwordx4 v[24:27], v4, s[16:19], s22 offen offset:16
    v_lshrrev_b32 v5, 5, v2
    v_lshlrev_b32 v5, 15, v5
    v_lshl_add_u32 v5, v1, 9, v5
    v_and_b32 v6, 31, v2
    v_lshl_add_u32 v5, v6, 4, v5
    s_waitcnt vmcnt(0)
    """)
    for i in range(8): a(f"v_add_f32 v{12+i}, 1.0, v{12+i}")
    for i in range(0, 8, 2): rbf2(a, 12+i, 13+i, 12+i, 13+i, 6)
    ln_row(a, 8, 12, 20, 28, 32)
    a(f"""
    s_mov_b32 s20, {dst_off}
    buffer_store_dwordx4 v[28:31], v5, s[16:19], s20 offen
    {name}_done:
    s_endpgm
    """)
    a.end_kernel(name, 48, 48)

def mfma(d, A, B, C=None, f="v"):
    C = C if C is not None else f"{f}[{d}:{d+15}]"
    return f"v_mfma_f32_32x32x16_bf16 {f}[{d}:{d+15}], {A}, {B}, {C}"
def R4(f, i): return f"{f}[{i}:{i+3}]"

def k_kv(a, name="kv_kernel"):
    a.launch(name, (256,1,1), (512,1,1), 131072)
    a.begin_kernel(name)
    a(f"s_cmp_ge_u32 s2, 256")
    a(f"s_cbranch_scc1 {name}_done")
    load_srds(a, [("ckv", 8), ("wuk", 12), ("wuv", 16), ("ws", 20)])
    a(f"""
    v_and_b32 v1, 63, v0               ; lane
    v_lshrrev_b32 v2, 6, v0
    s_nop 0
    v_readfirstlane_b32 s24, v2        ; wave
    s_and_b32 s25, s2, 7
    s_lshl_b32 s25, s25, 2
    s_bfe_u32 s26, s2, 0x20003
    s_add_u32 s25, s25, s26            ; head
    s_lshr_b32 s26, s2, 5
    s_cmp_ge_u32 s24, 4
    s_cselect_b32 s12, s16, s12
    s_cselect_b32 s13, s17, s13
    """)
    a(f"""
    v_lshrrev_b32 v3, 3, v1
    v_and_b32 v12, 7, v1               ; p
    v_lshrrev_b32 v13, 4, v1           ; l>>4
    """)
    for i in range(4):
        a(f"v_add_u32 v14, {(i&1)<<2}, v13")
        a(f"v_xor_b32 v14, v14, v12")
        a(f"v_lshlrev_b32 v14, 4, v14")
        a(f"v_lshl_add_u32 v14, v3, 10, v14")
        a(f"v_add_u32 v{4+i}, {i*8192 - i*1024}, v14")
    a(f"""
    v_and_b32 v12, 15, v1
    v_lshlrev_b32 v14, 2, v13
    v_xor_b32 v14, v14, v12
    v_lshlrev_b32 v14, 4, v14
    v_lshl_add_u32 v14, v13, 13, v14
    """)
    for i in range(4):
        a(f"v_add_u32 v{8+i}, {i*4*8192 - i*1024}, v14")
    a(f"""
    s_lshl_b32 s27, s26, 18
    s_lshl_b32 s29, s24, 15
    s_add_u32 s27, s27, s29
    s_and_b32 s28, s24, 3
    s_lshl_b32 s28, s28, 17
    s_lshl_b32 s29, s25, 8
    s_add_u32 s28, s28, s29
    s_lshl_b32 s30, s24, 12
    """)
    def dma(stage):
        out = []
        out.append(f"s_add_u32 m0, s30, {stage*65536}")
        for i in range(4): out.append(f"buffer_load_dwordx4 v{4+i}, s[8:11], s27 offen offset:{i*1024} lds")
        out.append(f"s_add_u32 m0, s30, {stage*65536 + 32768}")
        for i in range(4): out.append(f"buffer_load_dwordx4 v{8+i}, s[12:15], s28 offen offset:{i*1024} lds")
        out.append(f"s_add_u32 s27, s27, 128")
        out.append(f"s_add_u32 s28, s28, {64*8192}")
        return out
    for l in dma(0): a(l)
    for l in dma(1): a(l)
    a(f"""
    v_and_b32 v12, 31, v1
    v_lshrrev_b32 v13, 5, v1           ; h
    v_bfe_u32 v14, v1, 1, 3            ; swizzle
    s_and_b32 s29, s24, 1
    s_lshl_b32 s29, s29, 14
    """)
    for ks in range(4):
        a(f"v_add_u32 v15, {2*ks}, v13")
        a(f"v_xor_b32 v15, v15, v14")
        a(f"v_lshlrev_b32 v15, 4, v15")
        a(f"v_lshl_add_u32 v15, v12, 7, v15")
        a(f"v_add_u32 v{16+ks}, s29, v15")
    a(f"""
    v_bfe_u32 v12, v1, 2, 2            ; r
    v_and_b32 v14, 3, v1               ; c
    v_bfe_u32 v15, v1, 4, 1            ; nh
    v_lshlrev_b32 v14, 3, v14
    v_lshl_add_u32 v14, v15, 5, v14    ; 32nh + 8c
    v_lshl_add_u32 v15, v13, 3, v12    ; 8h + r
    v_lshl_add_u32 v14, v15, 8, v14    ; + k*256
    s_bfe_u32 s29, s24, 0x10001        ; dhalf
    s_lshl_b32 s29, s29, 1
    s_lshr_b32 s31, s24, 2
    s_lshl_b32 s31, s31, 14
    s_add_u32 s31, s31, 32768
    """)
    for db in range(2):
        a(f"s_add_u32 s33, s29, {db}")
        a(f"v_xor_b32 v15, s33, v12")
        a(f"v_lshl_add_u32 v15, v15, 6, v14")
        a(f"v_add_u32 v{20+db}, s31, v15")
    for i in range(128): a(f"v_accvgpr_write_b32 a{i}, 0")
    a("s_mov_b32 s32, 0")
    a(f"s_cmp_ge_u32 s24, 4")
    a(f"s_cbranch_scc1 {name}_vloop")
    def reads(ks, p):
        b = 32 + 24*p
        out = []
        for db in range(2):
            for jj in range(2):
                out.append(f"ds_read_b64_tr_b16 v[{b+16+4*db+2*jj}:{b+17+4*db+2*jj}], v{20+db} offset:{ks*4096+jj*1024}")
        for kb in range(4):
            out.append(f"ds_read_b128 v[{b+4*kb}:{b+4*kb+3}], v{16+ks} offset:{kb*4096}")
        return out
    def body(isv, tag):
        a(f"{name}_{tag}:")
        a("s_waitcnt vmcnt(8)")
        a("s_barrier")
        for l in reads(0, 0): a(l)
        for ks in range(4):
            p = ks & 1
            b = 32 + 24*p
            nxt = reads(ks+1, 1-p) if ks < 3 else []
            a(f"s_waitcnt lgkmcnt(0)")
            n = 0
            for kb in range(4):
                for db in range(2):
                    Cf, Wf = R4("v", b+4*kb), R4("v", b+16+4*db)
                    acc = 16*(kb*2+db)
                    a(mfma(acc, Cf, Wf, f="a") if isv else mfma(acc, Wf, Cf, f="a"))
                    if n < len(nxt): a(nxt[n])
                    n += 1
        a("s_barrier")
        a("s_add_u32 s32, s32, 1")
        a(f"s_cmp_ge_u32 s32, 7")
        a(f"s_cbranch_scc1 {name}_{tag}_nodma")
        a("s_and_b32 s33, s32, 1")
        a("s_xor_b32 s33, s33, 1")
        a("s_lshl_b32 s33, s33, 16")
        a("s_add_u32 s33, s33, s30")
        a("s_mov_b32 m0, s33")
        for i in range(4): a(f"buffer_load_dwordx4 v{4+i}, s[8:11], s27 offen offset:{i*1024} lds")
        a("s_add_u32 m0, s33, 32768")
        for i in range(4): a(f"buffer_load_dwordx4 v{8+i}, s[12:15], s28 offen offset:{i*1024} lds")
        a(f"s_add_u32 s27, s27, 128")
        a(f"s_add_u32 s28, s28, {64*8192}")
        a(f"s_branch {name}_{tag}_cont")
        a(f"{name}_{tag}_nodma:")
        a("s_waitcnt vmcnt(0)")
        a(f"{name}_{tag}_cont:")
        for r in range(16, 22): a(f"v_xor_b32 v{r}, 0x10000, v{r}")
        a(f"s_cmp_lt_u32 s32, 8")
        a(f"s_cbranch_scc1 {name}_{tag}")
    body(False, "kloop")
    a(f"s_branch {name}_epi")
    body(True, "vloop")
    a(f"{name}_epi:")
    a(f"""
    s_lshl_b32 s27, s25, 19
    s_lshl_b32 s28, s26, 16
    s_add_u32 s27, s27, s28
    s_and_b32 s28, s24, 1
    s_lshl_b32 s28, s28, 15
    s_add_u32 s27, s27, s28
    s_bfe_u32 s28, s24, 0x10001
    s_lshl_b32 s28, s28, 12
    s_add_u32 s27, s27, s28
    s_lshr_b32 s28, s24, 2
    s_lshl_b32 s28, s28, 24
    s_add_u32 s27, s27, s28
    s_add_u32 s27, s27, {WS_K}
    v_lshlrev_b32 v2, 4, v1
    """)
    assert WS_V - WS_K == 1 << 24
    n = 0
    for kb in range(4):
        for db in range(2):
            acc = 16*(kb*2+db)
            for s in range(2):
                t = 32 + 12*(n % 4); n += 1
                for i in range(8): a(f"v_accvgpr_read_b32 v{t+i}, a{acc+8*s+i}")
                for i in range(4): a(f"v_cvt_pk_bf16_f32 v{t+8+i}, v{t+2*i}, v{t+2*i+1}")
                a(f"buffer_store_dwordx4 v[{t+8}:{t+11}], v2, s[20:23], s27 offen offset:{(2*db+s)*1024}")
        a(f"s_add_u32 s27, s27, 8192")
    a(f"{name}_done:")
    a("s_endpgm")
    a.end_kernel(name, 256, 128)

def header():
    src = open("cdna_kernels/" + NAME + ".s.ref").read().split("\n")
    out = []
    for l in src:
        if l.startswith("; Override") or not l.startswith(";"): break
        out.append(l)
    return "\n".join(out)

def build(path, upto=99):
    a = Asm()
    k_mod(a)
    k_ln(a, "ln1_kernel", False, 0, WS_H1, 0, 1)
    k_kv(a)
    import gen_attn
    gen_attn.k_attn(a)
    import gen_tail
    gen_tail.k_gemm64(a, "oproj_kernel", WS_CTX, 256, "wo", 2, False, 0, True, WS_X1)
    k_ln(a, "ln2_kernel", True, WS_X1, WS_H2, 3, 4)
    gen_tail.k_ffn1(a)
    gen_tail.k_gemm64(a, "ffn2_kernel", WS_HID, 112, "w2", 5, True, WS_X1, False, 0)
    open(path, "w").write(a.text(header()))

if __name__ == "__main__":
    build(sys.argv[1] if len(sys.argv) > 1 else "k.s")
```

```python
import sys
from asmlib import Asm

NAME = "adaLN_cond__compressed_kv_cla__dense_activation_mish__prompt"
KA = dict(x=0, ckv=8, wq=16, wuk=24, wuv=32, wo=40, bx=48, w1=56, b1=64, w2=72, c=80, wmod=88, out=96, dbg=104, ws=112)
SZ = dict(x=2048*512*2, ckv=2048*512*2, wq=512*4096*2, wuk=512*4096*2, wuv=512*4096*2, wo=4096*512*2,
          w1=512*1792*2, b1=1792*2, w2=1792*512*2, c=1024, wmod=512*3072*2, out=2048*512*2, dbg=256, ws=268435456)
MB = 1 << 20
WS_MOD = 0
WS_H1 = 1 * MB
WS_X1 = 3 * MB
WS_H2 = 5 * MB
WS_HID = 7 * MB
WS_K = 16 * MB
WS_V = 32 * MB
WS_CTX = 49 * MB
LOG2E = 1.4426950408889634

import struct, os
DIAG = bool(int(os.environ.get("DIAG", "0")))
WS_STAMP = 128 * MB
_kidx = [0]
def stamp(a, i):
    if DIAG:
        a(f"s_memrealtime s[{84+2*i}:{85+2*i}]")
        a("s_waitcnt lgkmcnt(0)")
def stamp_begin(a):
    if DIAG:
        for i in range(8): a(f"s_mov_b32 s{84+2*i}, 0")
        stamp(a, 0)
        a("v_lshrrev_b32 v1, 6, v0")
        a("s_nop 0")
        a("v_readfirstlane_b32 s83, v1")
def stamp_end(a, name):
    k = _kidx[0]; _kidx[0] += 1
    if DIAG:
        a("s_waitcnt vmcnt(0)")
        stamp(a, 7)
        a("s_load_dwordx2 s[76:77], s[0:1], 112")
        a("s_mov_b64 exec, -1")
        a(f"s_mov_b32 s78, {SZ['ws']}")
        a("s_mov_b32 s79, 0x20000")
        a(f"s_lshl_b32 s80, s2, 3")
        a(f"s_add_u32 s80, s80, s83")
        a(f"s_lshl_b32 s80, s80, 5")
        a(f"s_add_u32 s80, s80, {WS_STAMP + k*65536*2}")
        for i in range(8): a(f"v_mov_b32 v{4+i}, s{84+2*i}")
        a("v_mov_b32 v1, 0")
        a("s_waitcnt lgkmcnt(0)")
        a("s_mov_b64 exec, 1")
        a("buffer_store_dwordx4 v[4:7], v1, s[76:79], s80 offen")
        a("buffer_store_dwordx4 v[8:11], v1, s[76:79], s80 offen offset:16")
def f32hex(x): return "0x%08x" % struct.unpack("<I", struct.pack("<f", x))[0]

def srd(a, d, name, ptr_s):
    a(f"s_mov_b32 s{d}, s{ptr_s}")
    a(f"s_mov_b32 s{d+1}, s{ptr_s+1}")
    a(f"s_mov_b32 s{d+2}, {SZ[name]}")
    a(f"s_mov_b32 s{d+3}, 0x20000")

def load_srds(a, lst):
    for name, d in lst:
        a(f"s_load_dwordx2 s[{d}:{d+1}], s[0:1], {KA[name]}")
    for name, d in lst:
        a(f"s_mov_b32 s{d+2}, {SZ[name]}")
        a(f"s_mov_b32 s{d+3}, 0x20000")
    a("s_waitcnt lgkmcnt(0)")

def wave_sum(a, v, t):
    for m in ("quad_perm:[1,0,3,2]", "quad_perm:[2,3,0,1]", "row_half_mirror", "row_mirror"):
        a(f"v_add_f32_dpp v{v}, v{v}, v{v} {m} row_mask:0xf bank_mask:0xf")
    a(f"v_mov_b32 v{t}, v{v}")
    a(f"v_permlane16_swap_b32 v{t}, v{v}")
    a(f"v_add_f32 v{v}, v{v}, v{t}")
    a(f"v_mov_b32 v{t}, v{v}")
    a(f"v_permlane32_swap_b32 v{t}, v{v}")
    a(f"v_add_f32 v{v}, v{v}, v{t}")

def rbf(a, d, s):
    a(f"v_cvt_pk_bf16_f32 v{d}, v{s}, v{s}")
    a(f"v_and_b32 v{d}, 0xffff0000, v{d}")

def rbf2(a, d0, d1, s0, s1, t):
    a(f"v_cvt_pk_bf16_f32 v{t}, v{s0}, v{s1}")
    a(f"v_lshlrev_b32 v{d0}, 16, v{t}")
    a(f"v_and_b32 v{d1}, 0xffff0000, v{t}")

def unpack8(a, d, s):
    for i in range(4):
        a(f"v_lshlrev_b32 v{d+2*i}, 16, v{s+i}")
        a(f"v_and_b32 v{d+2*i+1}, 0xffff0000, v{s+i}")

def k_mod(a, name="mod_kernel"):
    a.launch(name, (48,1,1), (512,1,1), 4096)
    a.begin_kernel(name)
    a(f"s_cmp_ge_u32 s2, 48")
    a(f"s_cbranch_scc1 {name}_done")
    stamp_begin(a)
    load_srds(a, [("c", 8), ("wmod", 12), ("ws", 16)])
    a(f"""
    v_lshrrev_b32 v1, 3, v0            ; (w*8 + ksub)
    v_and_b32 v2, 7, v0                ; cc
    v_lshrrev_b32 v3, 6, v0            ; w
    v_and_b32 v4, 7, v1                ; ksub
    v_lshl_add_u32 v4, v3, 6, v4       ; k0 = 64w + ksub
    v_mul_u32_u24 v5, 6144, v4
    v_lshl_add_u32 v5, v2, 4, v5
    s_lshl_b32 s3, s2, 7
    v_lshlrev_b32 v6, 1, v4
    """)
    for i in range(8):
        a(f"s_add_u32 s20, s3, {i*8*6144}")
        a(f"buffer_load_dwordx4 v[{16+4*i}:{19+4*i}], v5, s[12:15], s20 offen")
    for i in range(8):
        a(f"buffer_load_ushort v{8+i}, v6, s[8:11], 0 offen offset:{16*i}")
    a("s_waitcnt vmcnt(0)")
    for i in range(8):
        a(f"v_lshlrev_b32 v{8+i}, 16, v{8+i}")
        a(f"v_mul_f32 v7, {f32hex(-LOG2E)}, v{8+i}")
        a(f"v_exp_f32 v7, v7")
        a(f"v_add_f32 v7, 1.0, v7")
        a(f"v_rcp_f32 v7, v7")
        a(f"v_mul_f32 v7, v7, v{8+i}")
        rbf(a, 8+i, 7)
    for j in range(8): a(f"v_mov_b32 v{48+j}, 0")
    for i in range(8):
        unpack8(a, 56, 16+4*i)
        for j in range(8):
            a(f"v_fmac_f32 v{48+j}, v{8+i}, v{56+j}")
    for j in range(8):
        a(f"v_add_f32_dpp v{48+j}, v{48+j}, v{48+j} row_ror:8 row_mask:0xf bank_mask:0xf")
    for j in range(8):
        a(f"v_mov_b32 v{56+j}, v{48+j}")
    for j in range(8):
        a(f"v_permlane16_swap_b32 v{56+j}, v{48+j}")
    for j in range(8):
        a(f"v_add_f32 v{48+j}, v{48+j}, v{56+j}")
    for j in range(8):
        a(f"v_mov_b32 v{56+j}, v{48+j}")
    for j in range(8):
        a(f"v_permlane32_swap_b32 v{56+j}, v{48+j}")
    for j in range(8):
        a(f"v_add_f32 v{48+j}, v{48+j}, v{56+j}")
    a(f"""
    v_lshlrev_b32 v7, 8, v3
    v_lshl_add_u32 v7, v2, 5, v7
    ds_write_b128 v7, v[48:51]
    ds_write_b128 v7, v[52:55] offset:16
    s_waitcnt lgkmcnt(0)
    s_barrier
    v_and_b32 v1, 63, v0
    v_lshlrev_b32 v1, 2, v1
    """)
    for w in range(8): a(f"ds_read_b32 v{16+w}, v1 offset:{256*w}")
    a("s_waitcnt lgkmcnt(0)")
    for w in range(1, 8): a(f"v_add_f32 v16, v16, v{16+w}")
    rbf(a, 16, 16)
    a(f"""
    s_lshl_b32 s3, s2, 8
    s_add_u32 s3, s3, {WS_MOD}
    v_cmp_gt_u32 vcc, 64, v0
    s_and_saveexec_b64 s[22:23], vcc
    s_cbranch_execz {name}_fin
    buffer_store_dword v16, v1, s[16:19], s3 offen
    {name}_fin:
    """)
    stamp_end(a, name)
    a(f"{name}_done:")
    a("s_endpgm")
    a.end_kernel(name, 64, 64)

def ln_row(a, xv, sc, sh, o, t):
    e = t
    s, u = t + 8, t + 9
    unpack8(a, e, xv)
    a(f"v_add_f32 v{s}, v{e}, v{e+1}")
    for i in range(2, 8): a(f"v_add_f32 v{s}, v{s}, v{e+i}")
    wave_sum(a, s, u)
    a(f"v_mul_f32 v{s}, {f32hex(1/512)}, v{s}")
    q, d = t + 10, t + 11
    a(f"v_sub_f32 v{d}, v{e}, v{s}")
    a(f"v_mul_f32 v{q}, v{d}, v{d}")
    for i in range(1, 8):
        a(f"v_sub_f32 v{d}, v{e+i}, v{s}")
        a(f"v_fmac_f32 v{q}, v{d}, v{d}")
    wave_sum(a, q, u)
    a(f"v_mul_f32 v{q}, {f32hex(1/512)}, v{q}")
    rbf2(a, s, q, s, q, u)
    a(f"v_add_f32 v{q}, {f32hex(1e-5)}, v{q}")
    rbf(a, q, q)
    a(f"v_sqrt_f32 v{q}, v{q}")
    rbf(a, q, q)
    a(f"v_rcp_f32 v{q}, v{q}")
    for i in range(8): a(f"v_sub_f32 v{e+i}, v{e+i}, v{s}")
    for i in range(0, 8, 2): rbf2(a, e+i, e+i+1, e+i, e+i+1, u)
    for i in range(8): a(f"v_mul_f32 v{e+i}, v{e+i}, v{q}")
    for i in range(0, 8, 2): rbf2(a, e+i, e+i+1, e+i, e+i+1, u)
    for i in range(8): a(f"v_mul_f32 v{e+i}, v{e+i}, v{sc+i}")
    for i in range(0, 8, 2): rbf2(a, e+i, e+i+1, e+i, e+i+1, u)
    for i in range(8): a(f"v_add_f32 v{e+i}, v{e+i}, v{sh+i}")
    for i in range(4): a(f"v_cvt_pk_bf16_f32 v{o+i}, v{e+2*i}, v{e+2*i+1}")

def k_ln(a, name, src_is_ws, src_off, dst_off, sidx, cidx):
    a.launch(name, (256,1,1), (512,1,1), 0)
    a.begin_kernel(name)
    a(f"s_cmp_ge_u32 s2, 256")
    a(f"s_cbranch_scc1 {name}_done")
    stamp_begin(a)
    load_srds(a, [("x", 8), ("ws", 16)])
    src = 16 if src_is_ws else 8
    a(f"""
    v_and_b32 v1, 63, v0
    v_lshrrev_b32 v2, 6, v0
    s_lshl_b32 s3, s2, 3
    v_add_u32 v2, s3, v2              ; row
    v_lshlrev_b32 v3, 10, v2
    v_lshl_add_u32 v3, v1, 4, v3
    s_mov_b32 s20, {src_off}
    buffer_load_dwordx4 v[8:11], v3, s[{src}:{src+3}], s20 offen
    v_lshlrev_b32 v4, 5, v1
    s_mov_b32 s21, {WS_MOD + cidx*2048}
    s_mov_b32 s22, {WS_MOD + sidx*2048}
    buffer_load_dwordx4 v[12:15], v4, s[16:19], s21 offen
    buffer_load_dwordx4 v[16:19], v4, s[16:19], s21 offen offset:16
    buffer_load_dwordx4 v[20:23], v4, s[16:19], s22 offen
    buffer_load_dwordx4 v[24:27], v4, s[16:19], s22 offen offset:16
    v_lshrrev_b32 v5, 5, v2
    v_lshlrev_b32 v5, 15, v5
    v_lshl_add_u32 v5, v1, 9, v5
    v_and_b32 v6, 31, v2
    v_lshl_add_u32 v5, v6, 4, v5
    s_waitcnt vmcnt(0)
    """)
    for i in range(8): a(f"v_add_f32 v{12+i}, 1.0, v{12+i}")
    for i in range(0, 8, 2): rbf2(a, 12+i, 13+i, 12+i, 13+i, 6)
    ln_row(a, 8, 12, 20, 28, 32)
    a(f"""
    s_mov_b32 s20, {dst_off}
    buffer_store_dwordx4 v[28:31], v5, s[16:19], s20 offen
    """)
    stamp_end(a, name)
    a(f"{name}_done:")
    a("s_endpgm")
    a.end_kernel(name, 48, 48)

def mfma(d, A, B, C=None, f="v"):
    C = C if C is not None else f"{f}[{d}:{d+15}]"
    return f"v_mfma_f32_32x32x16_bf16 {f}[{d}:{d+15}], {A}, {B}, {C}"
def R4(f, i): return f"{f}[{i}:{i+3}]"

def k_kv(a, name="kv_kernel"):
    a.launch(name, (256,1,1), (512,1,1), 131072)
    a.begin_kernel(name)
    a(f"s_cmp_ge_u32 s2, 256")
    a(f"s_cbranch_scc1 {name}_done")
    stamp_begin(a)
    load_srds(a, [("ckv", 8), ("wuk", 12), ("wuv", 16), ("ws", 20)])
    a(f"""
    v_and_b32 v1, 63, v0               ; lane
    v_lshrrev_b32 v2, 6, v0
    s_nop 0
    v_readfirstlane_b32 s24, v2        ; wave
    s_and_b32 s25, s2, 7
    s_lshl_b32 s25, s25, 2
    s_bfe_u32 s26, s2, 0x20003
    s_add_u32 s25, s25, s26            ; head
    s_lshr_b32 s26, s2, 5
    s_cmp_ge_u32 s24, 4
    s_cselect_b32 s12, s16, s12
    s_cselect_b32 s13, s17, s13
    """)
    a(f"""
    v_lshrrev_b32 v3, 3, v1
    v_and_b32 v12, 7, v1               ; p
    v_lshrrev_b32 v13, 4, v1           ; l>>4
    """)
    for i in range(4):
        a(f"v_add_u32 v14, {(i&1)<<2}, v13")
        a(f"v_xor_b32 v14, v14, v12")
        a(f"v_lshlrev_b32 v14, 4, v14")
        a(f"v_lshl_add_u32 v14, v3, 10, v14")
        a(f"v_add_u32 v{4+i}, {i*8192 - i*1024}, v14")
    a(f"""
    v_and_b32 v12, 15, v1
    v_lshlrev_b32 v14, 2, v13
    v_xor_b32 v14, v14, v12
    v_lshlrev_b32 v14, 4, v14
    v_lshl_add_u32 v14, v13, 13, v14
    """)
    for i in range(4):
        a(f"v_add_u32 v{8+i}, {i*4*8192 - i*1024}, v14")
    a(f"""
    s_lshl_b32 s27, s26, 18
    s_lshl_b32 s29, s24, 15
    s_add_u32 s27, s27, s29
    s_and_b32 s28, s24, 3
    s_lshl_b32 s28, s28, 17
    s_lshl_b32 s29, s25, 8
    s_add_u32 s28, s28, s29
    s_lshl_b32 s30, s24, 12
    """)
    def dma(stage):
        out = []
        out.append(f"s_add_u32 m0, s30, {stage*65536}")
        for i in range(4): out.append(f"buffer_load_dwordx4 v{4+i}, s[8:11], s27 offen offset:{i*1024} lds")
        out.append(f"s_add_u32 m0, s30, {stage*65536 + 32768}")
        for i in range(4): out.append(f"buffer_load_dwordx4 v{8+i}, s[12:15], s28 offen offset:{i*1024} lds")
        out.append(f"s_add_u32 s27, s27, 128")
        out.append(f"s_add_u32 s28, s28, {64*8192}")
        return out
    for l in dma(0): a(l)
    for l in dma(1): a(l)
    a(f"""
    v_and_b32 v12, 31, v1
    v_lshrrev_b32 v13, 5, v1           ; h
    v_bfe_u32 v14, v1, 1, 3            ; swizzle
    s_and_b32 s29, s24, 1
    s_lshl_b32 s29, s29, 14
    """)
    for ks in range(4):
        a(f"v_add_u32 v15, {2*ks}, v13")
        a(f"v_xor_b32 v15, v15, v14")
        a(f"v_lshlrev_b32 v15, 4, v15")
        a(f"v_lshl_add_u32 v15, v12, 7, v15")
        a(f"v_add_u32 v{16+ks}, s29, v15")
    a(f"""
    v_bfe_u32 v12, v1, 2, 2            ; r
    v_and_b32 v14, 3, v1               ; c
    v_bfe_u32 v15, v1, 4, 1            ; nh
    v_lshlrev_b32 v14, 3, v14
    v_lshl_add_u32 v14, v15, 5, v14    ; 32nh + 8c
    v_lshl_add_u32 v15, v13, 3, v12    ; 8h + r
    v_lshl_add_u32 v14, v15, 8, v14    ; + k*256
    s_bfe_u32 s29, s24, 0x10001        ; dhalf
    s_lshl_b32 s29, s29, 1
    s_lshr_b32 s31, s24, 2
    s_lshl_b32 s31, s31, 14
    s_add_u32 s31, s31, 32768
    """)
    for db in range(2):
        a(f"s_add_u32 s33, s29, {db}")
        a(f"v_xor_b32 v15, s33, v12")
        a(f"v_lshl_add_u32 v15, v15, 6, v14")
        a(f"v_add_u32 v{20+db}, s31, v15")
    for i in range(128): a(f"v_accvgpr_write_b32 a{i}, 0")
    a("s_mov_b32 s32, 0")
    a(f"s_cmp_ge_u32 s24, 4")
    a(f"s_cbranch_scc1 {name}_vloop")
    def reads(ks, p):
        b = 32 + 24*p
        out = []
        for db in range(2):
            for jj in range(2):
                out.append(f"ds_read_b64_tr_b16 v[{b+16+4*db+2*jj}:{b+17+4*db+2*jj}], v{20+db} offset:{ks*4096+jj*1024}")
        for kb in range(4):
            out.append(f"ds_read_b128 v[{b+4*kb}:{b+4*kb+3}], v{16+ks} offset:{kb*4096}")
        return out
    def body(isv, tag):
        a(f"{name}_{tag}:")
        a("s_waitcnt vmcnt(8)")
        a("s_barrier")
        for l in reads(0, 0): a(l)
        for ks in range(4):
            p = ks & 1
            b = 32 + 24*p
            nxt = reads(ks+1, 1-p) if ks < 3 else []
            a(f"s_waitcnt lgkmcnt(0)")
            n = 0
            for kb in range(4):
                for db in range(2):
                    Cf, Wf = R4("v", b+4*kb), R4("v", b+16+4*db)
                    acc = 16*(kb*2+db)
                    a(mfma(acc, Cf, Wf, f="a") if isv else mfma(acc, Wf, Cf, f="a"))
                    if n < len(nxt): a(nxt[n])
                    n += 1
        a("s_barrier")
        a("s_add_u32 s32, s32, 1")
        a(f"s_cmp_ge_u32 s32, 7")
        a(f"s_cbranch_scc1 {name}_{tag}_nodma")
        a("s_and_b32 s33, s32, 1")
        a("s_xor_b32 s33, s33, 1")
        a("s_lshl_b32 s33, s33, 16")
        a("s_add_u32 s33, s33, s30")
        a("s_mov_b32 m0, s33")
        for i in range(4): a(f"buffer_load_dwordx4 v{4+i}, s[8:11], s27 offen offset:{i*1024} lds")
        a("s_add_u32 m0, s33, 32768")
        for i in range(4): a(f"buffer_load_dwordx4 v{8+i}, s[12:15], s28 offen offset:{i*1024} lds")
        a(f"s_add_u32 s27, s27, 128")
        a(f"s_add_u32 s28, s28, {64*8192}")
        a(f"s_branch {name}_{tag}_cont")
        a(f"{name}_{tag}_nodma:")
        a("s_waitcnt vmcnt(0)")
        a(f"{name}_{tag}_cont:")
        for r in range(16, 22): a(f"v_xor_b32 v{r}, 0x10000, v{r}")
        a(f"s_cmp_lt_u32 s32, 8")
        a(f"s_cbranch_scc1 {name}_{tag}")
    body(False, "kloop")
    a(f"s_branch {name}_epi")
    body(True, "vloop")
    a(f"{name}_epi:")
    stamp(a, 1)
    a(f"""
    s_lshl_b32 s27, s25, 19
    s_lshl_b32 s28, s26, 16
    s_add_u32 s27, s27, s28
    s_and_b32 s28, s24, 1
    s_lshl_b32 s28, s28, 15
    s_add_u32 s27, s27, s28
    s_bfe_u32 s28, s24, 0x10001
    s_lshl_b32 s28, s28, 12
    s_add_u32 s27, s27, s28
    s_lshr_b32 s28, s24, 2
    s_lshl_b32 s28, s28, 24
    s_add_u32 s27, s27, s28
    s_add_u32 s27, s27, {WS_K}
    v_lshlrev_b32 v2, 4, v1
    """)
    assert WS_V - WS_K == 1 << 24
    n = 0
    for kb in range(4):
        for db in range(2):
            acc = 16*(kb*2+db)
            for s in range(2):
                t = 32 + 12*(n % 4); n += 1
                for i in range(8): a(f"v_accvgpr_read_b32 v{t+i}, a{acc+8*s+i}")
                for i in range(4): a(f"v_cvt_pk_bf16_f32 v{t+8+i}, v{t+2*i}, v{t+2*i+1}")
                a(f"buffer_store_dwordx4 v[{t+8}:{t+11}], v2, s[20:23], s27 offen offset:{(2*db+s)*1024}")
        a(f"s_add_u32 s27, s27, 8192")
    stamp_end(a, name)
    a(f"{name}_done:")
    a("s_endpgm")
    a.end_kernel(name, 256, 128)

def header():
    src = open("cdna_kernels/" + NAME + ".s.ref").read().split("\n")
    out = []
    for l in src:
        if l.startswith("; Override") or not l.startswith(";"): break
        out.append(l)
    return "\n".join(out)
```

```python
from gen import *

S = [16, 32]; NEGM = 48; P = [64, 72]; T = 80; VL = 88; VSA = 89; VSB = 90; VQH = 91; VNINF = 92
VB = 3
OA = 0; QA = 64
def ring(i):
    i %= 16
    return R4("a", 96 + 4*i) if i < 8 else R4("v", 96 + 4*(i-8))
D = 6
SLOT = 32768; NSLOT = 5

def rd(m, r):
    pos = r & 1
    if m < 8: off = pos*8192 + m*1024
    else:
        s, db = (m-8)//4, (m-8) % 4
        off = 16384 + pos*8192 + (db*2+s)*1024
    return f"ds_read_b128 {ring(m)}, v{VB} offset:{off}"

def adv_slot():
    return ["s_add_u32 s30, s30, 0x8000", f"s_cmp_eq_u32 s30, {SLOT*NSLOT}", "s_cselect_b32 s30, 0, s30", f"v_add_u32 v{VB}, s30, v2"]

def softmax_ops(p):
    G = [[] for _ in range(16)]
    eg = [0,0,1,1] + list(range(2,14))
    t = lambda i: T + (i % 8)
    for i in range(16): G[eg[i]].append(f"v_exp_f32 v{t(i)}, v{S[p]+i}")
    G[1].append(f"v_add_f32 v{VSA}, v{t(0)}, v{t(1)}")
    G[2].append(f"v_add_f32 v{VSB}, v{t(2)}, v{t(3)}")
    for i in range(4, 16):
        d = VSA if i % 2 == 0 else VSB
        G[eg[i]+1].append(f"v_add_f32 v{d}, v{d}, v{t(i)}")
    cg = [3, 5, 5, 7, 9, 11, 13, 15]
    cg = [3, 3, 5, 7, 9, 11, 13, 15]
    for k in range(8):
        G[cg[k]].append(f"v_cvt_pk_bf16_f32 v{P[p]+k}, v{t(2*k)}, v{t(2*k+1)}")
    G[14].append(f"v_add_f32 v{VSA}, v{VSA}, v{VSB}")
    G[14].append(f"v_cmp_ngt_f32 vcc, s38, v{VSA}")
    return G

class Attn:
    def __init__(self, a, name):
        self.a = a; self.name = name; self.stubs = []
    def check(self, p):
        a = self.a
        st = a.newlabel(self.name + "_fb"); bk = a.newlabel(self.name + "_bk")
        self.stubs.append((st, bk, p))
        return [f"s_cbranch_vccnz {st}", f"{bk}:", f"v_add_f32 v{VL}, v{VL}, v{VSA}"]
    def step(self, r, last=False, extra=None, prebar=()):
        a = self.a
        p = r & 1
        G = softmax_ops(p)
        RI = [[] for _ in range(16)]
        for m in range(D, 16 + D):
            if last and m < 16: g = min(m - D, 6 - (15 - m)//2)
            else: g = m - D
            RI[g].append(m)
        issued = list(range(D))
        for m in range(16):
            if m % 2 == 0:
                need = m + 1
                if need in issued:
                    allowed = len(issued) - 1 - issued.index(need)
                    a(f"s_waitcnt lgkmcnt({allowed})")
                    issued = issued[issued.index(need)+1:]
            if m < 8:
                C = f"v[{NEGM}:{NEGM+15}]" if m == 0 else None
                a(mfma(S[1-p], ring(m), R4("a", QA + 4*m), C))
            else:
                s, db = (m-8)//4, (m-8) % 4
                a(mfma(OA + 16*db, ring(m), R4("v", P[1-p] + 4*s), f="a"))
            pre = []
            if last and m == 10:
                pre += ["s_waitcnt lgkmcnt(0)"] + list(prebar) + ["s_barrier"]; issued = []
            if m == 16 - D - 1 and (r & 1): pre = pre + adv_slot()[:3]
            if m == 16 - D and (r & 1): pre = pre + adv_slot()[3:]
            for l in pre: a(l)
            for mm in RI[m]:
                a(rd(mm % 16, r if mm < 16 else r + 1)); issued.append(mm)
            for l in G[m]: a(l)
            if extra:
                for l in extra[m]: a(l)
            if m == 15:
                for l in self.check(p): a(l)
    def final_step(self, r):
        a = self.a
        p = r & 1
        for m in range(8, 16): a(rd(m, r))
        if r & 1:
            for l in adv_slot(): a(l)
        for m in range(8, 16): a(rd(m, r + 1).replace(ring(m), ring(m - 8)))
        self.mask(p)
        ops = [l for g in softmax_ops(p) for l in g]
        a("s_waitcnt lgkmcnt(8)")
        per = (len(ops) + 7)//8
        for m in range(8, 16):
            s, db = (m-8)//4, (m-8) % 4
            a(mfma(OA + 16*db, ring(m), R4("v", P[1-p] + 4*s), f="a"))
            for l in ops[(m-8)*per:(m-7)*per]: a(l)
        for l in self.check(p): a(l)
        a("s_waitcnt lgkmcnt(0)")
        for m in range(8, 16):
            s, db = (m-8)//4, (m-8) % 4
            a(mfma(OA + 16*db, ring(m-8), R4("v", P[p] + 4*s), f="a"))
    def mask(self, p):
        a = self.a
        for r0 in range(0, 16, 4):
            for r in range(r0, r0+4):
                a(f"v_cmp_le_i32 s[{44+2*(r-r0)}:{45+2*(r-r0)}], {8*(r>>2)+(r&3)}, v{VQH}")
            for r in range(r0, r0+4):
                a(f"v_cndmask_b32 v{S[p]+r}, v{VNINF}, v{S[p]+r}, s[{44+2*(r-r0)}:{45+2*(r-r0)}]")
    def rowmax(self, p, d, t):
        a = self.a; s = S[p]
        a(f"v_max3_f32 v{d}, v{s}, v{s+1}, v{s+2}")
        for i in range(3, 15, 2): a(f"v_max3_f32 v{d}, v{d}, v{s+i}, v{s+i+1}")
        a(f"v_max_f32 v{d}, v{d}, v{s+15}")
        a(f"v_mov_b32 v{t}, v{d}")
        a(f"v_permlane32_swap_b32 v{t}, v{d}")
        a(f"v_max_f32 v{d}, v{d}, v{t}")
    def fallback(self, p):
        a = self.a
        a(f"{self.name}_fallback{p}:")
        a("s_nop 15"); a("s_nop 7")
        d, f_ = T, T+1
        self.rowmax(p, d, f_)
        a(f"v_max_f32 v{d}, 0, v{d}")
        a(f"v_exp_f32 v{f_}, -v{d}")
        for i in range(16):
            a(f"v_sub_f32 v{NEGM+i}, v{NEGM+i}, v{d}")
            a(f"v_sub_f32 v{S[0]+i}, v{S[0]+i}, v{d}")
            a(f"v_sub_f32 v{S[1]+i}, v{S[1]+i}, v{d}")
        a(f"v_mul_f32 v{VL}, v{VL}, v{f_}")
        for i0 in range(0, 64, 4):
            for i in range(4): a(f"v_accvgpr_read_b32 v{T+2+i}, a{OA+i0+i}")
            for i in range(4): a(f"v_mul_f32 v{T+2+i}, v{T+2+i}, v{f_}")
            for i in range(4): a(f"v_accvgpr_write_b32 a{OA+i0+i}, v{T+2+i}")
        for g in softmax_ops(p):
            for l in g:
                if not l.startswith("v_cmp"): a(l)
        a("s_nop 3")
        a("s_setpc_b64 s[40:41]")
    def emit_stubs(self):
        a = self.a
        for st, bk, p in self.stubs:
            a(f"{st}:")
            a(f"s_call_b64 s[40:41], {self.name}_fallback{p}")
            a(f"s_branch {bk}")
        self.fallback(0); self.fallback(1)

def dma_hs():
    o = ["s_add_u32 m0, s31, s34"]
    o += [f"buffer_load_dwordx4 v2, s[12:15], s32 offen offset:{i*1024} lds" for i in range(4)]
    o += ["s_add_u32 m0, m0, 0x4000"]
    o += [f"buffer_load_dwordx4 v2, s[12:15], s33 offen offset:{i*1024} lds" for i in range(4)]
    o += ["s_add_u32 s32, s32, 0x4000", "s_add_u32 s33, s33, 0x4000",
          "s_add_u32 s31, s31, 0x8000", f"s_cmp_eq_u32 s31, {SLOT*NSLOT}", "s_cselect_b32 s31, 0, s31"]
    return o

def k_attn(a, name="attn_kernel"):
    a.launch(name, (256,1,1), (512,1,1), 163840)
    a.begin_kernel(name)
    A = Attn(a, name)
    a(f"s_cmp_ge_u32 s2, 256")
    a(f"s_cbranch_scc1 {name}_done")
    stamp_begin(a)
    load_srds(a, [("wq", 8), ("ws", 12)])
    a(f"""
    v_and_b32 v1, 63, v0
    v_lshrrev_b32 v4, 6, v0
    v_lshlrev_b32 v2, 4, v1
    v_readfirstlane_b32 s24, v4        ; wave
    s_and_b32 s25, s2, 7
    s_lshl_b32 s25, s25, 2
    s_bfe_u32 s26, s2, 0x20003
    s_add_u32 s25, s25, s26            ; head
    s_lshr_b32 s26, s2, 5              ; j
    s_and_b32 s27, s24, 3              ; ws
    s_lshr_b32 s28, s24, 2             ; role
    s_sub_u32 s37, 15, s26             ; GX
    s_cmp_eq_u32 s28, 0
    s_cselect_b32 s36, s37, s26
    s_lshl_b32 s29, s36, 2
    s_add_u32 s29, s29, s27            ; strip
    s_lshl_b32 s34, s27, 12
    s_mov_b32 s38, {f32hex(2.0**40)}
    v_lshrrev_b32 v13, 4, v1
    v_and_b32 v12, 15, v1
    v_lshlrev_b32 v14, 2, v13
    v_xor_b32 v14, v14, v12
    v_lshlrev_b32 v14, 4, v14
    v_lshl_add_u32 v14, v13, 13, v14
    """)
    for i in range(4): a(f"v_add_u32 v{8+i}, {i*4*8192 - i*1024}, v14")
    a(f"""
    s_lshl_b32 s42, s24, 17            ; 16w*8192
    s_lshl_b32 s43, s25, 8
    s_add_u32 s42, s42, s43            ; W soffset
    s_lshl_b32 s43, s24, 12
    s_add_u32 s43, s43, 0x8000
    s_lshl_b32 s44, s29, 15
    s_add_u32 s44, s44, {WS_H1}
    """)
    for c in range(4):
        a("s_mov_b32 m0, s43")
        for i in range(4): a(f"buffer_load_dwordx4 v{8+i}, s[8:11], s42 offen offset:{i*1024} lds")
        for hh in range(2):
            for i in range(4):
                fr = c*8 + hh*4 + i
                a(f"buffer_load_dwordx4 a[{4*fr}:{4*fr+3}], v2, s[12:15], s44 offen offset:{i*1024}")
            a("s_add_u32 s44, s44, 4096")
        a(f"s_add_u32 s42, s42, {128*8192}")
        a("s_add_u32 s43, s43, 0x8000")
    a(f"""
    s_lshl_b32 s32, s25, 19
    s_add_u32 s32, s32, s34
    s_add_u32 s33, s32, {WS_V - 8192}
    s_add_u32 s45, s32, {WS_K}
    s_add_u32 s32, s32, {WS_K + 8192}
    s_mov_b32 s31, 0
    s_mov_b32 s30, 0
    s_cmp_eq_u32 s28, 0
    s_cbranch_scc1 {name}_nohs0
    s_mov_b32 s46, s33
    s_cmp_lt_u32 s27, 2
    s_cselect_b32 s33, s45, s33
    """)
    for l in dma_hs(): a(l)
    a("s_add_u32 s33, s46, 0x4000")
    a(f"{name}_nohs0:")
    a(f"""
    v_lshrrev_b32 v13, 5, v1           ; h
    v_bfe_u32 v12, v1, 2, 2            ; r
    v_and_b32 v14, 3, v1               ; c
    v_bfe_u32 v15, v1, 4, 1            ; nh
    v_lshlrev_b32 v14, 3, v14
    v_lshl_add_u32 v14, v15, 5, v14
    v_lshl_add_u32 v15, v13, 3, v12
    v_lshl_add_u32 v14, v15, 8, v14
    v_add_u32 v14, 0x8000, v14
    """)
    for db in range(4):
        a(f"v_xor_b32 v15, {db}, v12")
        a(f"v_lshl_add_u32 v{112+db}, v15, 6, v14")
    def wreads(ks, p):
        o = []
        for db in range(4):
            for jj in range(2):
                b = 80 + 16*p + 4*db + 2*jj
                o.append(f"ds_read_b64_tr_b16 v[{b}:{b+1}], v{112+db} offset:{ks*4096 + jj*1024}")
        return o
    NX = [36, 24, 12, 0]; NY = [44, 32, 28, 24]
    for c in range(4):
        lx = a.newlabel(name + "_qx"); lj = a.newlabel(name + "_qj")
        a(f"s_cmp_eq_u32 s28, 0")
        a(f"s_cbranch_scc1 {lx}")
        a(f"s_waitcnt vmcnt({NY[c]})")
        a("s_barrier")
        if c in (1, 2):
            for l in dma_hs(): a(l)
        a(f"s_branch {lj}")
        a(f"{lx}:")
        a(f"s_waitcnt vmcnt({NX[c]})")
        a("s_barrier")
        a(f"{lj}:")
        if c == 0: stamp(a, 1)
        for l in wreads(0, 0): a(l)
        for ks in range(8):
            p = ks & 1
            nxt = wreads(ks+1, 1-p) if ks < 7 else []
            a("s_waitcnt lgkmcnt(0)")
            for db in range(4):
                C = "0" if (c == 0 and ks == 0) else None
                a(mfma(16 + 16*db, R4("v", 80 + 16*p + 4*db), R4("a", 4*(c*8+ks)), C))
                for l in nxt[2*db:2*db+2]: a(l)
        if c < 3:
            for db in range(4): a(f"v_add_u32 v{112+db}, 0x8000, v{112+db}")
    stamp(a, 2)
    a(f"s_mov_b32 s42, {f32hex(128**-0.5 * LOG2E)}")
    for db in range(4):
        for i in range(16): a(f"v_mul_f32 v{16+16*db+i}, s42, v{16+16*db+i}")
        for i in range(8): a(f"v_cvt_pk_bf16_f32 v{80+i}, v{16+16*db+2*i}, v{16+16*db+2*i+1}")
        for i in range(8): a(f"v_accvgpr_write_b32 a{QA+8*db+i}, v{80+i}")
    a("s_waitcnt vmcnt(0)")
    a("s_barrier")
    a(f"v_mov_b32 v{VB}, v2")
    for m in range(8): a(f"ds_read_b128 {ring(m+8)}, v{VB} offset:{16384 + m*1024}")
    for m in range(D): a(rd(m, 0))
    for i in range(64): a(f"v_accvgpr_write_b32 a{OA+i}, 0")
    for i in range(8): a(f"v_mov_b32 v{P[1]+i}, 0")
    a(f"""
    v_mov_b32 v{VL}, 0
    v_mov_b32 v{VNINF}, 0xff800000
    v_and_b32 v{VQH}, 31, v1
    v_lshrrev_b32 v4, 5, v1
    v_lshlrev_b32 v4, 2, v4
    v_sub_u32 v{VQH}, v{VQH}, v4
    s_waitcnt lgkmcnt({D})
    """)
    for m in range(8): a(mfma(S[0], ring(m+8), R4("a", QA+4*m), "0" if m == 0 else None))
    a(f"s_cmp_eq_u32 s29, 0")
    a(f"s_cbranch_scc0 {name}_nomask0")
    A.mask(0)
    a(f"{name}_nomask0:")
    A.rowmax(0, T, T+1)
    for i in range(16):
        a(f"v_sub_f32 v{S[0]+i}, v{S[0]+i}, v{T}")
        a(f"v_sub_f32 v{NEGM+i}, 0, v{T}")
    stamp(a, 3)
    a("s_mov_b32 s35, 0")
    a(f"s_cmp_eq_u32 s28, 0")
    a(f"s_cbranch_scc0 {name}_ystart")
    a(f"{name}_xloop:")
    for r in range(4): A.step(r, last=(r == 3))
    a("s_add_u32 s35, s35, 1")
    a("s_cmp_lt_u32 s35, s36")
    a(f"s_cbranch_scc1 {name}_xloop")
    a(f"s_branch {name}_tail")
    a(f"{name}_ystart:")
    a("s_cmp_eq_u32 s36, 0")
    a(f"s_cbranch_scc1 {name}_ytail")
    a(f"{name}_yloop:")
    for r in range(4):
        ex = None
        if r < 2:
            d = dma_hs()
            grp = [d[0:2], d[2:3], d[3:4], d[4:5], d[5:7], d[7:8], d[8:9], d[9:10], d[10:12], d[12:15]]
            ex = [[] for _ in range(16)]
            for i, g in enumerate(grp): ex[[0,2,3,4,5,6,7,8,11,12][i]] += g
        A.step(r, last=(r == 3), extra=ex, prebar=["s_waitcnt vmcnt(0)"])
    a("s_add_u32 s35, s35, 1")
    a("s_cmp_lt_u32 s35, s36")
    a(f"s_cbranch_scc1 {name}_yloop")
    a(f"{name}_ytail:")
    for l in dma_hs() + dma_hs(): a(l)
    a(f"{name}_tail:")
    stamp(a, 4)
    for r in range(4):
        if r < 3:
            a(f"s_cmp_eq_u32 s27, {r}")
            a(f"s_cbranch_scc1 {name}_fin{r}")
            A.step(r)
    for r in (3, 2, 1, 0):
        a(f"{name}_fin{r}:")
        A.final_step(r)
        if r != 0: a(f"s_branch {name}_tdone")
    a(f"{name}_tdone:")
    stamp(a, 5)
    a(f"s_cmp_eq_u32 s28, 0")
    a(f"s_cbranch_scc1 {name}_epi")
    a("s_add_u32 s35, s36, 1")
    a("s_waitcnt vmcnt(0)")
    a("s_barrier")
    a("s_cmp_ge_u32 s35, s37")
    a(f"s_cbranch_scc1 {name}_epi")
    for l in dma_hs() + dma_hs(): a(l)
    a(f"{name}_epi:")
    a(f"""
    v_mov_b32 v{T}, v{VL}
    s_nop 1
    v_permlane32_swap_b32 v{T}, v{VL}
    v_add_f32 v{VL}, v{VL}, v{T}
    v_rcp_f32 v{VL}, v{VL}
    s_lshl_b32 s42, s29, 18
    s_lshl_b32 s43, s25, 13
    s_add_u32 s42, s42, s43
    s_add_u32 s42, s42, {WS_CTX}
    """)
    for f_ in range(8):
        t = 16 + 12*(f_ % 4)
        for i in range(8): a(f"v_accvgpr_read_b32 v{t+i}, a{OA+8*f_+i}")
        for i in range(8): a(f"v_mul_f32 v{t+i}, v{t+i}, v{VL}")
        for i in range(4): a(f"v_cvt_pk_bf16_f32 v{t+8+i}, v{t+2*i}, v{t+2*i+1}")
        a(f"buffer_store_dwordx4 v[{t+8}:{t+11}], v2, s[12:15], s42 offen offset:{(f_%4)*1024}")
        if f_ == 3: a("s_add_u32 s42, s42, 4096")
    a(f"s_cmp_eq_u32 s28, 0")
    a(f"s_cbranch_scc1 {name}_fin")
    a(f"{name}_p2:")
    a("s_cmp_ge_u32 s35, s37")
    a(f"s_cbranch_scc1 {name}_fin")
    a("s_add_u32 s35, s35, 1")
    a("s_cmp_ge_u32 s35, s37")
    a(f"s_cbranch_scc1 {name}_p2last")
    a("s_waitcnt vmcnt(8)")
    a("s_barrier")
    for l in dma_hs() + dma_hs(): a(l)
    a(f"s_branch {name}_p2")
    a(f"{name}_p2last:")
    a("s_waitcnt vmcnt(0)")
    a("s_barrier")
    a(f"{name}_fin:")
    stamp_end(a, name)
    a(f"{name}_done:")
    a("s_endpgm")
    A.emit_stubs()
    a.end_kernel(name, 256, 128)
```

```python
from gen import *

def k_gemm64(a, name, a_off, nks, wname, gate_idx, res_ws, res_off, out_ws, out_off, PD=4):
    n = nks // 8
    RS = 17408
    a.launch(name, (256,1,1), (512,1,1), 8*RS)
    a.begin_kernel(name)
    a(f"s_cmp_ge_u32 s2, 256")
    a(f"s_cbranch_scc1 {name}_done")
    stamp_begin(a)
    load_srds(a, [(wname, 8), ("ws", 12), ("x", 16), ("out", 20)])
    rs = 12 if res_ws else 16
    os_ = 12 if out_ws else 20
    a(f"""
    v_and_b32 v1, 63, v0
    v_lshrrev_b32 v4, 6, v0
    v_lshlrev_b32 v2, 4, v1
    v_readfirstlane_b32 s24, v4        ; wave
    s_and_b32 s25, s2, 7
    s_lshl_b32 s25, s25, 2
    s_bfe_u32 s26, s2, 0x20003
    s_add_u32 s25, s25, s26
    s_lshr_b32 s26, s2, 5
    s_mul_i32 s27, s25, {2*nks*1024}
    s_mul_i32 s29, s24, {n*1024}
    s_add_u32 s27, s27, s29
    s_add_u32 s27, s27, {a_off}
    s_add_u32 s28, s27, {nks*1024}
    s_mul_i32 s29, s24, {16*n*1024}
    s_lshl_b32 s30, s26, 7
    s_add_u32 s29, s29, s30
    s_mul_i32 s30, s24, {RS}
    v_lshrrev_b32 v6, 3, v1
    v_and_b32 v7, 7, v1
    v_bfe_u32 v8, v1, 4, 1
    v_lshlrev_b32 v8, 2, v8
    v_xor_b32 v7, v7, v8
    v_lshlrev_b32 v7, 4, v7
    v_lshl_add_u32 v4, v6, 10, v7
    v_add_u32 v5, {8*1024 - 1024}, v4
    """)
    AF = lambda s, st: 32 + 8*(s % (PD+1)) + 4*st
    def loads(s):
        o = [f"s_add_u32 m0, s30, {(s % (PD+1))*2048}",
             f"buffer_load_dwordx4 v4, s[8:11], s29 offen lds",
             f"buffer_load_dwordx4 v5, s[8:11], s29 offen offset:1024 lds",
             f"buffer_load_dwordx4 {R4('v', AF(s,0))}, v2, s[12:15], s27 offen offset:{(s%4)*1024}",
             f"buffer_load_dwordx4 {R4('v', AF(s,1))}, v2, s[12:15], s28 offen offset:{(s%4)*1024}",
             f"s_add_u32 s29, s29, {16*1024}"]
        if s % 4 == 3: o += ["s_add_u32 s27, s27, 4096", "s_add_u32 s28, s28, 4096"]
        return o
    a(f"""
    v_lshrrev_b32 v10, 3, v0
    v_and_b32 v11, 7, v0               ; cc
    s_lshl_b32 s31, s25, 16
    s_lshl_b32 s32, s26, 7
    s_add_u32 s31, s31, s32
    v_lshlrev_b32 v12, 10, v10
    v_lshl_add_u32 v12, v11, 4, v12
    s_add_u32 s32, s31, {res_off}
    buffer_load_dwordx4 v[16:19], v12, s[{rs}:{rs+3}], s32 offen
    v_lshlrev_b32 v13, 5, v11
    s_lshl_b32 s33, s26, 8
    s_add_u32 s33, s33, {WS_MOD + gate_idx*2048}
    buffer_load_dwordx4 v[20:23], v13, s[12:15], s33 offen
    buffer_load_dwordx4 v[24:27], v13, s[12:15], s33 offen offset:16
    """)
    for s in range(PD):
        for l in loads(s): a(l)
    a(f"""
    v_lshrrev_b32 v8, 5, v1            ; hh
    v_bfe_u32 v9, v1, 2, 2             ; r
    v_lshl_add_u32 v8, v8, 2, v9       ; 4hh + r
    v_lshlrev_b32 v8, 7, v8
    v_and_b32 v14, 3, v1
    v_lshl_add_u32 v8, v14, 3, v8
    v_bfe_u32 v14, v1, 4, 1
    v_lshl_add_u32 v8, v14, 5, v8
    v_add_u32 v8, s30, v8
    v_lshrrev_b32 v9, 1, v9            ; r>>1
    v_lshl_add_u32 v6, v9, 6, v8
    v_xor_b32 v7, 64, v6
    """)
    assert RS % 128 == 0
    WF = lambda s, cb: 80 + 8*(s % 2) + 4*cb
    def reads(s):
        o = []
        for cb in range(2):
            for jj in range(2):
                b = WF(s, cb) + 2*jj
                o.append(f"ds_read_b64_tr_b16 v[{b}:{b+1}], v{6+cb} offset:{(s % (PD+1))*2048 + jj*1024}")
        return o
    a(f"s_waitcnt vmcnt({4*(PD-1)})")
    stamp(a, 2)
    for l in reads(0): a(l)
    for s in range(n):
        if s + PD < n:
            for l in loads(s + PD): a(l)
        if s + 1 < n:
            last_issued = min(s + PD, n - 1)
            a(f"s_waitcnt vmcnt({4*(last_issued - (s+1))})")
            for l in reads(s+1): a(l)
            a("s_waitcnt lgkmcnt(4)")
        else:
            a("s_waitcnt lgkmcnt(0)")
        for cb in range(2):
            for st in range(2):
                a(mfma(16*(cb*2+st), R4("v", WF(s, cb)), R4("v", AF(s, st)), "0" if s == 0 else None, f="a"))
    stamp(a, 1)
    a(f"""
    v_and_b32 v8, 31, v1
    v_mul_u32_u24 v8, 272, v8
    v_lshrrev_b32 v9, 5, v1
    v_lshl_add_u32 v8, v9, 4, v8
    v_add_u32 v8, s30, v8
    """)
    for cb in range(2):
        for st in range(2):
            for q in range(4):
                b = 16*(cb*2+st) + 4*q
                a(f"ds_write_b128 v8, a[{b}:{b+3}] offset:{st*32*272 + cb*128 + q*32}")
    a(f"""
    v_mul_u32_u24 v8, 272, v10
    v_lshl_add_u32 v8, v11, 5, v8
    v_add_u32 v9, {4*RS}, v8
    s_waitcnt lgkmcnt(0)
    s_barrier
    """)
    for w in range(8):
        a(f"ds_read_b128 v[{32+8*w}:{35+8*w}], v{8 + w//4} offset:{(w%4)*RS}")
        a(f"ds_read_b128 v[{36+8*w}:{39+8*w}], v{8 + w//4} offset:{(w%4)*RS + 16}")
    unpack8(a, 100, 16)
    for w in range(1, 8):
        a(f"s_waitcnt lgkmcnt({14 - 2*w})")
        for i in range(8): a(f"v_add_f32 v{32+i}, v{32+i}, v{32+8*w+i}")
    for i in range(0, 8, 2): rbf2(a, 32+i, 33+i, 32+i, 33+i, 9)
    for i in range(8): a(f"v_mul_f32 v{32+i}, v{32+i}, v{20+i}")
    for i in range(0, 8, 2): rbf2(a, 32+i, 33+i, 32+i, 33+i, 9)
    for i in range(8): a(f"v_add_f32 v{32+i}, v{32+i}, v{100+i}")
    for i in range(4): a(f"v_cvt_pk_bf16_f32 v{40+i}, v{32+2*i}, v{33+2*i}")
    a(f"s_add_u32 s32, s31, {out_off}")
    a(f"buffer_store_dwordx4 v[40:43], v12, s[{os_}:{os_+3}], s32 offen")
    stamp_end(a, name)
    a(f"{name}_done:")
    a("s_endpgm")
    a.end_kernel(name, 176, 112)

def k_ffn1(a, name="ffn1_kernel", NST=4):
    a.launch(name, (224,1,1), (512,1,1), NST*32768)
    a.begin_kernel(name)
    a(f"s_cmp_ge_u32 s2, 224")
    a(f"s_cbranch_scc1 {name}_done")
    stamp_begin(a)
    load_srds(a, [("w1", 8), ("ws", 12), ("b1", 16)])
    a(f"""
    v_and_b32 v1, 63, v0
    v_lshrrev_b32 v4, 6, v0
    v_lshlrev_b32 v2, 4, v1
    v_readfirstlane_b32 s24, v4        ; wave
    s_and_b32 s25, s2, 7
    s_lshl_b32 s25, s25, 1
    s_bfe_u32 s26, s2, 0x10003
    s_add_u32 s25, s25, s26
    s_lshr_b32 s26, s2, 4
    s_lshl_b32 s27, s25, 2
    s_lshr_b32 s28, s24, 1
    s_add_u32 s27, s27, s28
    s_lshl_b32 s27, s27, 15
    s_and_b32 s29, s24, 1
    s_lshl_b32 s29, s29, 11
    s_add_u32 s27, s27, s29
    s_add_u32 s27, s27, {WS_H2}
    s_mul_i32 s28, s24, {8*3584}
    s_lshl_b32 s29, s26, 8
    s_add_u32 s28, s28, s29
    s_lshl_b32 s30, s24, 11            ; LDS w*2048
    v_lshrrev_b32 v13, 4, v1
    v_and_b32 v12, 15, v1
    v_lshlrev_b32 v14, 2, v13
    v_xor_b32 v14, v14, v12
    v_lshlrev_b32 v14, 4, v14
    v_mul_u32_u24 v13, 3584, v13
    v_add_u32 v4, v13, v14
    v_add_u32 v5, {4*3584 - 1024}, v4
    v_lshrrev_b32 v13, 5, v1
    v_lshlrev_b32 v6, 3, v13           ; 4h*2 bytes
    s_lshl_b32 s31, s26, 8
    s_lshr_b32 s32, s24, 1
    s_lshl_b32 s32, s32, 6
    s_add_u32 s31, s31, s32
    """)
    for q in range(4): a(f"buffer_load_dwordx2 v[{16+2*q}:{17+2*q}], v6, s[16:19], s31 offen offset:{16*q}")
    def loads(c):
        b = (c % NST)*32768
        return [f"s_add_u32 m0, s30, {b}",
                f"buffer_load_dwordx4 v2, s[12:15], s27 offen lds",
                f"buffer_load_dwordx4 v2, s[12:15], s27 offen offset:1024 lds",
                f"s_add_u32 m0, s30, {b + 16384}",
                f"buffer_load_dwordx4 v4, s[8:11], s28 offen lds",
                f"buffer_load_dwordx4 v5, s[8:11], s28 offen offset:1024 lds",
                f"s_add_u32 s27, s27, 4096", f"s_add_u32 s28, s28, {64*3584}"]
    for c in range(NST - 1):
        for l in loads(c): a(l)
    a(f"""
    s_and_b32 s29, s24, 1
    s_lshl_b32 s29, s29, 13
    v_add_u32 v7, s29, v2
    v_bfe_u32 v12, v1, 2, 2            ; r
    v_and_b32 v14, 3, v1
    v_bfe_u32 v15, v1, 4, 1
    v_lshlrev_b32 v14, 3, v14
    v_lshl_add_u32 v14, v15, 5, v14
    v_lshl_add_u32 v15, v13, 3, v12    ; 8h + r
    v_lshl_add_u32 v14, v15, 8, v14
    s_lshr_b32 s29, s24, 1
    v_xor_b32 v15, s29, v12
    v_lshl_add_u32 v8, v15, 6, v14
    v_add_u32 v8, 16384, v8
    v_add_u32 v9, 65536, v7
    v_add_u32 v10, 65536, v8
    s_waitcnt vmcnt({4*(NST-1)})
    """)
    for q in range(4):
        for i in range(2):
            a(f"v_lshlrev_b32 v{32+4*q+2*i}, 16, v{16+2*q+i}")
            a(f"v_and_b32 v{33+4*q+2*i}, 0xffff0000, v{16+2*q+i}")
    def reads(c, ks, p):
        b = (c % NST)*32768
        va, vw = (7, 8) if b < 65536 else (9, 10)
        b %= 65536
        f0 = 80 + 12*p
        return [f"ds_read_b64_tr_b16 v[{f0}:{f0+1}], v{vw} offset:{b + ks*4096}",
                f"ds_read_b64_tr_b16 v[{f0+2}:{f0+3}], v{vw} offset:{b + ks*4096 + 1024}",
                f"ds_read_b128 v[{f0+4}:{f0+7}], v{va} offset:{b + ks*1024}",
                f"ds_read_b128 v[{f0+8}:{f0+11}], v{va} offset:{b + 4096 + ks*1024}"]
    for c in range(8):
        issued_last = min(c + NST - 2, 7)
        a(f"s_waitcnt vmcnt({4*(issued_last - c)})")
        a("s_barrier")
        if c + NST - 1 < 8:
            for l in loads(c + NST - 1): a(l)
        for l in reads(c, 0, 0): a(l)
        for ks in range(4):
            p = ks & 1
            f0 = 80 + 12*p
            if ks < 3:
                for l in reads(c, ks+1, 1-p): a(l)
                a("s_waitcnt lgkmcnt(4)")
            else: a("s_waitcnt lgkmcnt(0)")
            for st in range(2):
                C = "v[32:47]" if (c == 0 and ks == 0) else None
                a(mfma(48 + 16*st, R4("v", f0), R4("v", f0 + 4 + 4*st), C))
    stamp(a, 1)
    a(f"""
    s_lshl_b32 s27, s25, 2
    s_and_b32 s29, s24, 1
    s_lshl_b32 s29, s29, 1
    s_add_u32 s27, s27, s29
    s_mul_i32 s27, s27, {112*1024}
    s_lshl_b32 s29, s26, 13
    s_add_u32 s27, s27, s29
    s_lshr_b32 s29, s24, 1
    s_lshl_b32 s29, s29, 11
    s_add_u32 s27, s27, s29
    s_add_u32 s27, s27, {WS_HID}
    s_mov_b32 s33, {f32hex(LOG2E)}
    s_mov_b32 s34, {f32hex(40.0)}
    """)
    for st in range(2):
        for s in range(2):
            h = 48 + 16*st + 8*s
            t = 16; u = 24
            for i in range(8): a(f"v_mul_f32 v{t+i}, s33, v{h+i}")
            for i in range(8): a(f"v_min_f32 v{t+i}, s34, v{t+i}")
            for i in range(8): a(f"v_exp_f32 v{t+i}, v{t+i}")
            for i in range(8): a(f"v_add_f32 v{u+i}, 2.0, v{t+i}")
            for i in range(8): a(f"v_mul_f32 v{t+i}, v{t+i}, v{u+i}")
            for i in range(8): a(f"v_add_f32 v{u+i}, 2.0, v{t+i}")
            for i in range(8): a(f"v_rcp_f32 v{u+i}, v{u+i}")
            for i in range(8): a(f"v_mul_f32 v{t+i}, v{t+i}, v{u+i}")
            for i in range(8): a(f"v_mul_f32 v{t+i}, v{t+i}, v{h+i}")
            o = 32 + 4*(2*st+s)
            for i in range(4): a(f"v_cvt_pk_bf16_f32 v{o+i}, v{t+2*i}, v{t+2*i+1}")
            a(f"buffer_store_dwordx4 v[{o}:{o+3}], v2, s[12:15], s27 offen offset:{s*1024}")
        a(f"s_add_u32 s27, s27, {112*1024}")
    stamp_end(a, name)
    a(f"{name}_done:")
    a("s_endpgm")
    a.end_kernel(name, 104, 104)
```

```python
import sys
from gen import *
import gen_attn, gen_tail
def build(path):
    a = Asm()
    k_mod(a)
    k_ln(a, "ln1_kernel", False, 0, WS_H1, 0, 1)
    k_kv(a)
    gen_attn.k_attn(a)
    gen_tail.k_gemm64(a, "oproj_kernel", WS_CTX, 256, "wo", 2, False, 0, True, WS_X1)
    k_ln(a, "ln2_kernel", True, WS_X1, WS_H2, 3, 4)
    gen_tail.k_ffn1(a)
    gen_tail.k_gemm64(a, "ffn2_kernel", WS_HID, 112, "w2", 5, True, WS_X1, False, 0)
    open(path, "w").write(a.text(header()))
if __name__ == "__main__":
    build(sys.argv[1] if len(sys.argv) > 1 else "k.s")
```

```python
import sys
from asmlib import Asm

NAME = "adaLN_cond__compressed_kv_cla__dense_activation_mish__prompt"
KA = dict(x=0, ckv=8, wq=16, wuk=24, wuv=32, wo=40, bx=48, w1=56, b1=64, w2=72, c=80, wmod=88, out=96, dbg=104, ws=112)
SZ = dict(x=2048*512*2, ckv=2048*512*2, wq=512*4096*2, wuk=512*4096*2, wuv=512*4096*2, wo=4096*512*2,
          w1=512*1792*2, b1=1792*2, w2=1792*512*2, c=1024, wmod=512*3072*2, out=2048*512*2, dbg=256, ws=268435456)
MB = 1 << 20
WS_MOD = 0
WS_H1 = 1 * MB
WS_X1 = 3 * MB
WS_H2 = 5 * MB
WS_HID = 7 * MB
WS_K = 16 * MB
WS_V = 32 * MB
WS_CTX = 49 * MB
LOG2E = 1.4426950408889634

import struct, os
DIAG = bool(int(os.environ.get("DIAG", "0")))
WS_STAMP = 128 * MB
_kidx = [0]
def stamp(a, i):
    if DIAG:
        a(f"s_memrealtime s[{84+2*i}:{85+2*i}]")
        a("s_waitcnt lgkmcnt(0)")
def stamp_begin(a):
    if DIAG:
        for i in range(8): a(f"s_mov_b32 s{84+2*i}, 0")
        stamp(a, 0)
        a("v_lshrrev_b32 v1, 6, v0")
        a("s_nop 0")
        a("v_readfirstlane_b32 s83, v1")
def stamp_end(a, name):
    k = _kidx[0]; _kidx[0] += 1
    if DIAG:
        a("s_waitcnt vmcnt(0)")
        stamp(a, 7)
        a("s_load_dwordx2 s[76:77], s[0:1], 112")
        a("s_mov_b64 exec, -1")
        a(f"s_mov_b32 s78, {SZ['ws']}")
        a("s_mov_b32 s79, 0x20000")
        a(f"s_lshl_b32 s80, s2, 3")
        a(f"s_add_u32 s80, s80, s83")
        a(f"s_lshl_b32 s80, s80, 5")
        a(f"s_add_u32 s80, s80, {WS_STAMP + k*65536*2}")
        for i in range(8): a(f"v_mov_b32 v{4+i}, s{84+2*i}")
        a("v_mov_b32 v1, 0")
        a("s_waitcnt lgkmcnt(0)")
        a("s_mov_b64 exec, 1")
        a("buffer_store_dwordx4 v[4:7], v1, s[76:79], s80 offen")
        a("buffer_store_dwordx4 v[8:11], v1, s[76:79], s80 offen offset:16")
def f32hex(x): return "0x%08x" % struct.unpack("<I", struct.pack("<f", x))[0]

def srd(a, d, name, ptr_s):
    a(f"s_mov_b32 s{d}, s{ptr_s}")
    a(f"s_mov_b32 s{d+1}, s{ptr_s+1}")
    a(f"s_mov_b32 s{d+2}, {SZ[name]}")
    a(f"s_mov_b32 s{d+3}, 0x20000")

def load_srds(a, lst):
    for name, d in lst:
        a(f"s_load_dwordx2 s[{d}:{d+1}], s[0:1], {KA[name]}")
    for name, d in lst:
        a(f"s_mov_b32 s{d+2}, {SZ[name]}")
        a(f"s_mov_b32 s{d+3}, 0x20000")
    a("s_waitcnt lgkmcnt(0)")

def wave_sum(a, v, t):
    for m in ("quad_perm:[1,0,3,2]", "quad_perm:[2,3,0,1]", "row_half_mirror", "row_mirror"):
        a(f"v_add_f32_dpp v{v}, v{v}, v{v} {m} row_mask:0xf bank_mask:0xf")
    a(f"v_mov_b32 v{t}, v{v}")
    a(f"v_permlane16_swap_b32 v{t}, v{v}")
    a(f"v_add_f32 v{v}, v{v}, v{t}")
    a(f"v_mov_b32 v{t}, v{v}")
    a(f"v_permlane32_swap_b32 v{t}, v{v}")
    a(f"v_add_f32 v{v}, v{v}, v{t}")

def rbf(a, d, s):
    a(f"v_cvt_pk_bf16_f32 v{d}, v{s}, v{s}")
    a(f"v_and_b32 v{d}, 0xffff0000, v{d}")

def rbf2(a, d0, d1, s0, s1, t):
    a(f"v_cvt_pk_bf16_f32 v{t}, v{s0}, v{s1}")
    a(f"v_lshlrev_b32 v{d0}, 16, v{t}")
    a(f"v_and_b32 v{d1}, 0xffff0000, v{t}")

def unpack8(a, d, s):
    for i in range(4):
        a(f"v_lshlrev_b32 v{d+2*i}, 16, v{s+i}")
        a(f"v_and_b32 v{d+2*i+1}, 0xffff0000, v{s+i}")

def k_mod(a, name="mod_kernel"):
    a.launch(name, (48,1,1), (512,1,1), 4096)
    a.begin_kernel(name)
    a(f"s_cmp_ge_u32 s2, 48")
    a(f"s_cbranch_scc1 {name}_done")
    stamp_begin(a)
    load_srds(a, [("c", 8), ("wmod", 12), ("ws", 16)])
    a(f"""
    v_lshrrev_b32 v1, 3, v0            ; (w*8 + ksub)
    v_and_b32 v2, 7, v0                ; cc
    v_lshrrev_b32 v3, 6, v0            ; w
    v_and_b32 v4, 7, v1                ; ksub
    v_lshl_add_u32 v4, v3, 6, v4       ; k0 = 64w + ksub
    v_mul_u32_u24 v5, 6144, v4
    v_lshl_add_u32 v5, v2, 4, v5
    s_lshl_b32 s3, s2, 7
    v_lshlrev_b32 v6, 1, v4
    """)
    for i in range(8):
        a(f"s_add_u32 s20, s3, {i*8*6144}")
        a(f"buffer_load_dwordx4 v[{16+4*i}:{19+4*i}], v5, s[12:15], s20 offen")
    for i in range(8):
        a(f"buffer_load_ushort v{8+i}, v6, s[8:11], 0 offen offset:{16*i}")
    a("s_waitcnt vmcnt(0)")
    for i in range(8):
        a(f"v_lshlrev_b32 v{8+i}, 16, v{8+i}")
        a(f"v_mul_f32 v7, {f32hex(-LOG2E)}, v{8+i}")
        a(f"v_exp_f32 v7, v7")
        a(f"v_add_f32 v7, 1.0, v7")
        a(f"v_rcp_f32 v7, v7")
        a(f"v_mul_f32 v7, v7, v{8+i}")
        rbf(a, 8+i, 7)
    for j in range(8): a(f"v_mov_b32 v{48+j}, 0")
    for i in range(8):
        unpack8(a, 56, 16+4*i)
        for j in range(8):
            a(f"v_fmac_f32 v{48+j}, v{8+i}, v{56+j}")
    for j in range(8):
        a(f"v_add_f32_dpp v{48+j}, v{48+j}, v{48+j} row_ror:8 row_mask:0xf bank_mask:0xf")
    for j in range(8):
        a(f"v_mov_b32 v{56+j}, v{48+j}")
    for j in range(8):
        a(f"v_permlane16_swap_b32 v{56+j}, v{48+j}")
    for j in range(8):
        a(f"v_add_f32 v{48+j}, v{48+j}, v{56+j}")
    for j in range(8):
        a(f"v_mov_b32 v{56+j}, v{48+j}")
    for j in range(8):
        a(f"v_permlane32_swap_b32 v{56+j}, v{48+j}")
    for j in range(8):
        a(f"v_add_f32 v{48+j}, v{48+j}, v{56+j}")
    a(f"""
    v_lshlrev_b32 v7, 8, v3
    v_lshl_add_u32 v7, v2, 5, v7
    ds_write_b128 v7, v[48:51]
    ds_write_b128 v7, v[52:55] offset:16
    s_waitcnt lgkmcnt(0)
    s_barrier
    v_and_b32 v1, 63, v0
    v_lshlrev_b32 v1, 2, v1
    """)
    for w in range(8): a(f"ds_read_b32 v{16+w}, v1 offset:{256*w}")
    a("s_waitcnt lgkmcnt(0)")
    for w in range(1, 8): a(f"v_add_f32 v16, v16, v{16+w}")
    rbf(a, 16, 16)
    a(f"""
    s_lshl_b32 s3, s2, 8
    s_add_u32 s3, s3, {WS_MOD}
    v_cmp_gt_u32 vcc, 64, v0
    s_and_saveexec_b64 s[22:23], vcc
    s_cbranch_execz {name}_fin
    buffer_store_dword v16, v1, s[16:19], s3 offen
    {name}_fin:
    """)
    stamp_end(a, name)
    a(f"{name}_done:")
    a("s_endpgm")
    a.end_kernel(name, 64, 64)

def ln_row(a, xv, sc, sh, o, t):
    e = t
    s, u = t + 8, t + 9
    unpack8(a, e, xv)
    a(f"v_add_f32 v{s}, v{e}, v{e+1}")
    for i in range(2, 8): a(f"v_add_f32 v{s}, v{s}, v{e+i}")
    wave_sum(a, s, u)
    a(f"v_mul_f32 v{s}, {f32hex(1/512)}, v{s}")
    q, d = t + 10, t + 11
    a(f"v_sub_f32 v{d}, v{e}, v{s}")
    a(f"v_mul_f32 v{q}, v{d}, v{d}")
    for i in range(1, 8):
        a(f"v_sub_f32 v{d}, v{e+i}, v{s}")
        a(f"v_fmac_f32 v{q}, v{d}, v{d}")
    wave_sum(a, q, u)
    a(f"v_mul_f32 v{q}, {f32hex(1/512)}, v{q}")
    rbf2(a, s, q, s, q, u)
    a(f"v_add_f32 v{q}, {f32hex(1e-5)}, v{q}")
    rbf(a, q, q)
    a(f"v_sqrt_f32 v{q}, v{q}")
    rbf(a, q, q)
    a(f"v_rcp_f32 v{q}, v{q}")
    for i in range(8): a(f"v_sub_f32 v{e+i}, v{e+i}, v{s}")
    for i in range(0, 8, 2): rbf2(a, e+i, e+i+1, e+i, e+i+1, u)
    for i in range(8): a(f"v_mul_f32 v{e+i}, v{e+i}, v{q}")
    for i in range(0, 8, 2): rbf2(a, e+i, e+i+1, e+i, e+i+1, u)
    for i in range(8): a(f"v_mul_f32 v{e+i}, v{e+i}, v{sc+i}")
    for i in range(0, 8, 2): rbf2(a, e+i, e+i+1, e+i, e+i+1, u)
    for i in range(8): a(f"v_add_f32 v{e+i}, v{e+i}, v{sh+i}")
    for i in range(4): a(f"v_cvt_pk_bf16_f32 v{o+i}, v{e+2*i}, v{e+2*i+1}")

def k_ln(a, name, src_is_ws, src_off, dst_off, sidx, cidx):
    a.launch(name, (256,1,1), (512,1,1), 0)
    a.begin_kernel(name)
    a(f"s_cmp_ge_u32 s2, 256")
    a(f"s_cbranch_scc1 {name}_done")
    stamp_begin(a)
    load_srds(a, [("x", 8), ("ws", 16)])
    src = 16 if src_is_ws else 8
    a(f"""
    v_and_b32 v1, 63, v0
    v_lshrrev_b32 v2, 6, v0
    s_lshl_b32 s3, s2, 3
    v_add_u32 v2, s3, v2              ; row
    v_lshlrev_b32 v3, 10, v2
    v_lshl_add_u32 v3, v1, 4, v3
    s_mov_b32 s20, {src_off}
    buffer_load_dwordx4 v[8:11], v3, s[{src}:{src+3}], s20 offen
    v_lshlrev_b32 v4, 5, v1
    s_mov_b32 s21, {WS_MOD + cidx*2048}
    s_mov_b32 s22, {WS_MOD + sidx*2048}
    buffer_load_dwordx4 v[12:15], v4, s[16:19], s21 offen
    buffer_load_dwordx4 v[16:19], v4, s[16:19], s21 offen offset:16
    buffer_load_dwordx4 v[20:23], v4, s[16:19], s22 offen
    buffer_load_dwordx4 v[24:27], v4, s[16:19], s22 offen offset:16
    v_lshrrev_b32 v5, 5, v2
    v_lshlrev_b32 v5, 15, v5
    v_lshl_add_u32 v5, v1, 9, v5
    v_and_b32 v6, 31, v2
    v_lshl_add_u32 v5, v6, 4, v5
    s_waitcnt vmcnt(0)
    """)
    for i in range(8): a(f"v_add_f32 v{12+i}, 1.0, v{12+i}")
    for i in range(0, 8, 2): rbf2(a, 12+i, 13+i, 12+i, 13+i, 6)
    ln_row(a, 8, 12, 20, 28, 32)
    a(f"""
    s_mov_b32 s20, {dst_off}
    buffer_store_dwordx4 v[28:31], v5, s[16:19], s20 offen
    """)
    stamp_end(a, name)
    a(f"{name}_done:")
    a("s_endpgm")
    a.end_kernel(name, 48, 48)

def mfma(d, A, B, C=None, f="v"):
    C = C if C is not None else f"{f}[{d}:{d+15}]"
    return f"v_mfma_f32_32x32x16_bf16 {f}[{d}:{d+15}], {A}, {B}, {C}"
def R4(f, i): return f"{f}[{i}:{i+3}]"

def k_kv(a, name="kv_kernel"):
    a.launch(name, (256,1,1), (512,1,1), 131072)
    a.begin_kernel(name)
    a(f"s_cmp_ge_u32 s2, 256")
    a(f"s_cbranch_scc1 {name}_done")
    stamp_begin(a)
    load_srds(a, [("ckv", 8), ("wuk", 12), ("wuv", 16), ("ws", 20)])
    a(f"""
    v_and_b32 v1, 63, v0               ; lane
    v_lshrrev_b32 v2, 6, v0
    s_nop 0
    v_readfirstlane_b32 s24, v2        ; wave
    s_and_b32 s25, s2, 7
    s_lshl_b32 s25, s25, 2
    s_bfe_u32 s26, s2, 0x20003
    s_add_u32 s25, s25, s26            ; head
    s_lshr_b32 s26, s2, 5
    s_cmp_ge_u32 s24, 4
    s_cselect_b32 s12, s16, s12
    s_cselect_b32 s13, s17, s13
    """)
    a(f"""
    v_lshrrev_b32 v3, 3, v1
    v_and_b32 v12, 7, v1               ; p
    v_lshrrev_b32 v13, 4, v1           ; l>>4
    """)
    for i in range(4):
        a(f"v_add_u32 v14, {(i&1)<<2}, v13")
        a(f"v_xor_b32 v14, v14, v12")
        a(f"v_lshlrev_b32 v14, 4, v14")
        a(f"v_lshl_add_u32 v14, v3, 10, v14")
        a(f"v_add_u32 v{4+i}, {i*8192 - i*1024}, v14")
    a(f"""
    v_and_b32 v12, 15, v1
    v_lshlrev_b32 v14, 2, v13
    v_xor_b32 v14, v14, v12
    v_lshlrev_b32 v14, 4, v14
    v_lshl_add_u32 v14, v13, 13, v14
    """)
    for i in range(4):
        a(f"v_add_u32 v{8+i}, {i*4*8192 - i*1024}, v14")
    a(f"""
    s_lshl_b32 s27, s26, 18
    s_lshl_b32 s29, s24, 15
    s_add_u32 s27, s27, s29
    s_and_b32 s28, s24, 3
    s_lshl_b32 s28, s28, 17
    s_lshl_b32 s29, s25, 8
    s_add_u32 s28, s28, s29
    s_lshl_b32 s30, s24, 12
    """)
    def dma(stage):
        out = []
        out.append(f"s_add_u32 m0, s30, {stage*65536}")
        for i in range(4): out.append(f"buffer_load_dwordx4 v{4+i}, s[8:11], s27 offen offset:{i*1024} lds")
        out.append(f"s_add_u32 m0, s30, {stage*65536 + 32768}")
        for i in range(4): out.append(f"buffer_load_dwordx4 v{8+i}, s[12:15], s28 offen offset:{i*1024} lds")
        out.append(f"s_add_u32 s27, s27, 128")
        out.append(f"s_add_u32 s28, s28, {64*8192}")
        return out
    for l in dma(0): a(l)
    for l in dma(1): a(l)
    a(f"""
    v_and_b32 v12, 31, v1
    v_lshrrev_b32 v13, 5, v1           ; h
    v_bfe_u32 v14, v1, 1, 3            ; swizzle
    s_and_b32 s29, s24, 1
    s_lshl_b32 s29, s29, 14
    """)
    for ks in range(4):
        a(f"v_add_u32 v15, {2*ks}, v13")
        a(f"v_xor_b32 v15, v15, v14")
        a(f"v_lshlrev_b32 v15, 4, v15")
        a(f"v_lshl_add_u32 v15, v12, 7, v15")
        a(f"v_add_u32 v{16+ks}, s29, v15")
    a(f"""
    v_bfe_u32 v12, v1, 2, 2            ; r
    v_and_b32 v14, 3, v1               ; c
    v_bfe_u32 v15, v1, 4, 1            ; nh
    v_lshlrev_b32 v14, 3, v14
    v_lshl_add_u32 v14, v15, 5, v14    ; 32nh + 8c
    v_lshl_add_u32 v15, v13, 3, v12    ; 8h + r
    v_lshl_add_u32 v14, v15, 8, v14    ; + k*256
    s_bfe_u32 s29, s24, 0x10001        ; dhalf
    s_lshl_b32 s29, s29, 1
    s_lshr_b32 s31, s24, 2
    s_lshl_b32 s31, s31, 14
    s_add_u32 s31, s31, 32768
    """)
    for db in range(2):
        a(f"s_add_u32 s33, s29, {db}")
        a(f"v_xor_b32 v15, s33, v12")
        a(f"v_lshl_add_u32 v15, v15, 6, v14")
        a(f"v_add_u32 v{20+db}, s31, v15")
    for i in range(128): a(f"v_accvgpr_write_b32 a{i}, 0")
    a("s_mov_b32 s32, 0")
    a(f"s_cmp_ge_u32 s24, 4")
    a(f"s_cbranch_scc1 {name}_vloop")
    def reads(ks, p):
        b = 32 + 24*p
        out = []
        for db in range(2):
            for jj in range(2):
                out.append(f"ds_read_b64_tr_b16 v[{b+16+4*db+2*jj}:{b+17+4*db+2*jj}], v{20+db} offset:{ks*4096+jj*1024}")
        for kb in range(4):
            out.append(f"ds_read_b128 v[{b+4*kb}:{b+4*kb+3}], v{16+ks} offset:{kb*4096}")
        return out
    def body(isv, tag):
        a(f"{name}_{tag}:")
        a("s_waitcnt vmcnt(8)")
        a("s_barrier")
        for l in reads(0, 0): a(l)
        for ks in range(4):
            p = ks & 1
            b = 32 + 24*p
            nxt = reads(ks+1, 1-p) if ks < 3 else []
            a(f"s_waitcnt lgkmcnt(0)")
            n = 0
            for kb in range(4):
                for db in range(2):
                    Cf, Wf = R4("v", b+4*kb), R4("v", b+16+4*db)
                    acc = 16*(kb*2+db)
                    a(mfma(acc, Cf, Wf, f="a") if isv else mfma(acc, Wf, Cf, f="a"))
                    if n < len(nxt): a(nxt[n])
                    n += 1
        a("s_barrier")
        a("s_add_u32 s32, s32, 1")
        a(f"s_cmp_ge_u32 s32, 7")
        a(f"s_cbranch_scc1 {name}_{tag}_nodma")
        a("s_and_b32 s33, s32, 1")
        a("s_xor_b32 s33, s33, 1")
        a("s_lshl_b32 s33, s33, 16")
        a("s_add_u32 s33, s33, s30")
        a("s_mov_b32 m0, s33")
        for i in range(4): a(f"buffer_load_dwordx4 v{4+i}, s[8:11], s27 offen offset:{i*1024} lds")
        a("s_add_u32 m0, s33, 32768")
        for i in range(4): a(f"buffer_load_dwordx4 v{8+i}, s[12:15], s28 offen offset:{i*1024} lds")
        a(f"s_add_u32 s27, s27, 128")
        a(f"s_add_u32 s28, s28, {64*8192}")
        a(f"s_branch {name}_{tag}_cont")
        a(f"{name}_{tag}_nodma:")
        a("s_waitcnt vmcnt(0)")
        a(f"{name}_{tag}_cont:")
        for r in range(16, 22): a(f"v_xor_b32 v{r}, 0x10000, v{r}")
        a(f"s_cmp_lt_u32 s32, 8")
        a(f"s_cbranch_scc1 {name}_{tag}")
    body(False, "kloop")
    a(f"s_branch {name}_epi")
    body(True, "vloop")
    a(f"{name}_epi:")
    stamp(a, 1)
    a(f"""
    s_lshl_b32 s27, s25, 19
    s_lshl_b32 s28, s26, 16
    s_add_u32 s27, s27, s28
    s_and_b32 s28, s24, 1
    s_lshl_b32 s28, s28, 15
    s_add_u32 s27, s27, s28
    s_bfe_u32 s28, s24, 0x10001
    s_lshl_b32 s28, s28, 12
    s_add_u32 s27, s27, s28
    s_lshr_b32 s28, s24, 2
    s_lshl_b32 s28, s28, 24
    s_add_u32 s27, s27, s28
    s_add_u32 s27, s27, {WS_K}
    v_lshlrev_b32 v2, 4, v1
    """)
    assert WS_V - WS_K == 1 << 24
    n = 0
    for kb in range(4):
        for db in range(2):
            acc = 16*(kb*2+db)
            for s in range(2):
                t = 32 + 12*(n % 4); n += 1
                for i in range(8): a(f"v_accvgpr_read_b32 v{t+i}, a{acc+8*s+i}")
                for i in range(4): a(f"v_cvt_pk_bf16_f32 v{t+8+i}, v{t+2*i}, v{t+2*i+1}")
                a(f"buffer_store_dwordx4 v[{t+8}:{t+11}], v2, s[20:23], s27 offen offset:{(2*db+s)*1024}")
        a(f"s_add_u32 s27, s27, 8192")
    stamp_end(a, name)
    a(f"{name}_done:")
    a("s_endpgm")
    a.end_kernel(name, 256, 128)

def header():
    src = open("cdna_kernels/" + NAME + ".s.ref").read().split("\n")
    out = []
    for l in src:
        if l.startswith("; Override") or not l.startswith(";"): break
        out.append(l)
    return "\n".join(out)

def build(path, upto=99):
    a = Asm()
    k_mod(a)
    k_ln(a, "ln1_kernel", False, 0, WS_H1, 0, 1)
    k_kv(a)
    import gen_attn
    gen_attn.k_attn(a)
    import gen_tail
    gen_tail.k_gemm64(a, "oproj_kernel", WS_CTX, 256, "wo", 2, False, 0, True, WS_X1)
    k_ln(a, "ln2_kernel", True, WS_X1, WS_H2, 3, 4)
    gen_tail.k_ffn1(a)
    gen_tail.k_gemm64(a, "ffn2_kernel", WS_HID, 112, "w2", 5, True, WS_X1, False, 0)
    open(path, "w").write(a.text(header()))

if __name__ == "__main__":
    build(sys.argv[1] if len(sys.argv) > 1 else "k.s")
```
